```python
import torch

def _softmax(x, axis=-1):
    return torch.softmax(x, dim=axis)
def _gelu(x):
    return torch.nn.functional.gelu(x, approximate="tanh")
def _silu(x):
    return torch.nn.functional.silu(x)
def _sigmoid(x):
    return torch.sigmoid(x)
def _layernorm(x, axis=-1, eps=1e-5):
    m = x.mean(dim=axis, keepdim=True)
    v = x.var(dim=axis, keepdim=True, unbiased=False)
    return (x - m) / torch.sqrt(v + eps)
def _scatter_add(tgt, idx, src, axis=0):
    return tgt.clone().index_add_(axis, idx, src)
def _segment_sum(src, seg, n):
    out = torch.zeros((n,) + src.shape[1:], dtype=src.dtype)
    return out.index_add_(0, seg, src)
def _pad(x, pw):
    flat = tuple(v for pair in reversed(pw) for v in pair)
    return torch.nn.functional.pad(x, flat)

kernel_name = 'standalone__fused_io_aware_attn__prompt'

def setup_inputs():

    _w = (lambda a: (lambda t: t.to(torch.bfloat16) if t.is_floating_point() else t)(torch.as_tensor(a)))
    B, H, S = 2, 16, 2048
    Dh = max(1, 448 // 16)
    return {
        "q": _w((lambda *s: torch.randn(*s, dtype=torch.bfloat16) * 0.8)(B, H, S, Dh)),
        "k": _w((lambda *s: torch.randn(*s, dtype=torch.bfloat16) * 0.8)(B, H, S, Dh)),
        "v": _w((lambda *s: torch.randn(*s, dtype=torch.bfloat16) * 0.05)(B, H, S, Dh)),
    }

def reference(q, k, v):
    scale = q.shape[-1] ** -0.5
    s = torch.einsum('bhqd,bhkd->bhqk', q, k) * scale
    p = _softmax(s, axis=-1)
    return torch.einsum('bhqk,bhkd->bhqd', p, v)
```

```python
import re

class I:
    def __init__(s, text, kind, rd=(), wr=(), **kw):
        s.text=text; s.kind=kind; s.rd=set(rd); s.wr=set(wr); s.kw=kw
def R(a, n=1): return [f"v{a+i}" for i in range(n)]
def vr(a, n): return f"v{a}" if n==1 else f"v[{a}:{a+n-1}]"

class Prog:
    def __init__(s): s.ins=[]
    def raw(s, text, kind="other", rd=(), wr=(), **kw):
        s.ins.append(I(text, kind, rd, wr, **kw)); return s.ins[-1]
    def label(s, name): s.raw(name+":", "label")
    def comment(s, t): s.raw("; "+t, "comment")
    def salu(s, text): s.raw(text, "salu")
    def valu(s, text, rd, wr, trans=False): s.raw(text, "trans" if trans else "valu", rd, wr)
    def exp(s, r): s.valu(f"v_exp_f32 v{r}, v{r}", R(r), R(r), trans=True)
    def mfma(s, d, a, b, c):
        cs = "0" if c is None else vr(c,16)
        s.raw(f"v_mfma_f32_32x32x16_bf16 {vr(d,16)}, {vr(a,4)}, {vr(b,4)}, {cs}", "mfma",
              R(a,4)+R(b,4)+([] if c is None else R(c,16)), R(d,16), ab=set(R(a,4)+R(b,4)), c=(None if c is None else c), d=d)
    def smfmac(s, d, a, b, idx):
        s.raw(f"v_smfmac_f32_32x32x32_bf16 {vr(d,16)}, {vr(a,4)}, {vr(b,8)}, v{idx}", "mfma",
              R(a,4)+R(b,8)+R(idx)+R(d,16), R(d,16), ab=set(R(a,4)+R(b,8)+R(idx)), c=d, d=d)
    def dsread(s, op, d, n, addr, off):
        s.raw(f"{op} {vr(d,n)}, v{addr} offset:{off}", "ds", R(addr), R(d,n), load=True)
    def dswrite(s, op, addr, d, n, off):
        s.raw(f"{op} v{addr}, {vr(d,n)} offset:{off}", "ds", R(addr)+R(d,n), [], load=False)
    def wait(s, vm=None, lgkm=None):
        t="s_waitcnt"
        if vm is not None: t+=f" vmcnt({vm})"
        if lgkm is not None: t+=f" lgkmcnt({lgkm})"
        s.raw(t, "wait", vm=vm, lgkm=lgkm)
    def nop(s, n): s.raw(f"s_nop {n}", "nop", n=n)
    def text(s):
        out=[]
        for i in s.ins:
            out.append(i.text if i.kind in("label",) else "    "+i.text)
        return "\n".join(out)+"\n"
    def check(s, verbose=True):
        errs=[]
        pos=0
        lastw={}
        lastCread={}
        ds=[]
        vm=[]
        pend={}
        for i in s.ins:
            if i.kind in ("label","comment"): continue
            def dist(r):
                p,_=lastw[r]; return pos-p-1
            for r in (i.rd|i.wr):
                if r in pend and i.kind!="wait":
                    errs.append(f"pending load reg {r} used by: {i.text}")
            for r in i.rd:
                if r in lastw:
                    p,w=lastw[r]; d=pos-p-1
                    if w.kind=="mfma":
                        if i.kind=="mfma":
                            if r in i.kw["ab"]: need=12
                            elif i.kw["c"]==w.kw["d"]: need=0
                            else: need=10
                        else: need=12
                        if d<need: errs.append(f"mfma->{i.kind} RAW {r} dist {d}<{need}: {w.text} -> {i.text}")
                    elif w.kind in("valu","trans"):
                        if i.kind=="mfma" and d<2: errs.append(f"valu->mfma {r} dist {d}<2: {w.text} -> {i.text}")
                        if w.kind=="trans" and i.kind in("valu",) and d<1: errs.append(f"trans->valu {r}: {w.text} -> {i.text}")
                        if "permlane" in i.text and d<2: errs.append(f"valu->permlane {r}: {w.text} -> {i.text}")
                        if "readfirstlane" in i.text and d<1: errs.append(f"valu->readfirstlane {r}: {w.text} -> {i.text}")
            for r in i.wr:
                if r in lastw:
                    p,w=lastw[r]; d=pos-p-1
                    if w.kind=="mfma" and i.kind!="mfma" and d<12:
                        errs.append(f"mfma->{i.kind} WAW {r} dist {d}<12: {w.text} -> {i.text}")
                if r in lastCread and i.kind in("valu","trans"):
                    d=pos-lastCread[r]-1
                    if d<7: errs.append(f"mfma C read -> valu write WAR {r} dist {d}<7: {i.text}")
            if i.kind=="mfma" and i.kw["c"] is not None:
                for r in R(i.kw["c"],16): lastCread[r]=pos
            if i.kind=="ds":
                ds.append(i)
                if i.kw.get("load"):
                    for r in i.wr: pend[r]=i
            if i.kind=="vmem":
                vm.append(i)
                if i.kw.get("load"):
                    for r in i.wr: pend[r]=i
            if i.kind=="wait":
                if i.kw["lgkm"] is not None:
                    while len(ds)>i.kw["lgkm"]:
                        o=ds.pop(0)
                        for r in o.wr:
                            if pend.get(r) is o: del pend[r]
                if i.kw["vm"] is not None:
                    while len(vm)>i.kw["vm"]:
                        o=vm.pop(0)
                        for r in o.wr:
                            if pend.get(r) is o: del pend[r]
            if len(ds)>15: errs.append(f"lgkm overflow at {i.text}")
            for r in i.wr: lastw[r]=(pos,i)
            pos += (i.kw["n"]+1) if i.kind=="nop" else 1
        return errs
```

```python
import sys, math, struct
from asmlib import *

NAME="standalone__fused_io_aware_attn__prompt"
HEADB=114688; BLK=7168; TILE=1792
KRING=0; NSLOT=8; VRING=NSLOT*BLK; ONES=2*NSLOT*BLK; XCH=ONES+4096; LDS=XCH+32768
def f2u(x): return struct.unpack("<I",struct.pack("<f",x))[0]
CSC=math.log2(math.e)/math.sqrt(28.0)

vLANE=2; vK=3; vD=4; vQO=5
vVA=6
vOUT=14; vIDX=15
vV=16
vQ=32
vKF=48
vS=64
vO=128
vT=160
NV=192

class G(Prog):
    def __init__(s, opt):
        super().__init__(); s.opt=opt; s.q=[]
    def ldsread(s, op, d, n, addr, off):
        s.dsread(op,d,n,addr,off); s.q.append(set(R(d,n)))
    def need(s, regs):
        regs=set(regs); last=-1
        for k,x in enumerate(s.q):
            if x&regs: last=k
        if last>=0:
            n=len(s.q)-1-last
            s.wait(lgkm=n); s.q=s.q[last+1:]
    def stamp(s, k):
        if s.opt.get("stamps"):
            s.raw(f"s_memtime s[{60+2*k}:{61+2*k}]","salu")

def S(u): return vS+16*(u&3)
def O(u): return vO+16*(u&1)
def Q(u): return vQ+8*(u&1)
def KF(j): return vKF+8*(j&1)
def VF(j): return vV+8*(j&1)

def kread(g,j,rho):
    n=j>>1; kt=j&1
    g.ldsread("ds_read_b64", KF(j)+2*rho, 2, vK, KRING+(n%NSLOT)*BLK+kt*TILE+8*rho)
def vread(g,j,i):
    n=j>>1; kt=j&1
    g.ldsread("ds_read_b64_tr_b16", VF(j)+2*i, 2, vVA+(n%NSLOT), kt*TILE+[0,224,896,1120][i])
def M1(g,u): g.mfma(S(u), KF(u>>1), Q(u), None)
def M2(g,u): g.mfma(S(u), KF(u>>1)+4, Q(u)+4, S(u))
def P1(g,u): g.smfmac(O(u), VF(u>>1), S(u), vIDX)
def P2(g,u): g.smfmac(O(u), VF(u>>1)+4, S(u)+8, vIDX)

def dma_setup(g,pg):
    g.salu(f"s_add_u32 m0, s31, {(pg%(NSLOT//2))*2*BLK}")
    g.salu(f"s_add_u32 s30, s34, {pg*2*BLK}")
def dma_piece(g,k):
    g.raw(f"buffer_load_dwordx4 v{vD}, s[16:19], s30 offen offset:{1024*k} lds","vmem",R(vD),[],load=False)

def build(opt):
    g=G(opt)
    g.salu("s_cmp_ge_u32 s2, 0x100")
    g.salu("s_cbranch_scc1 L_end")
    g.salu("s_load_dwordx8 s[4:11], s[0:1], 0x0")
    g.stamp(0)
    g.valu("v_lshrrev_b32 v1, 6, v0",["v0"],["v1"])
    g.valu(f"v_and_b32 v{vLANE}, 63, v0",["v0"],R(vLANE))
    g.valu("v_readfirstlane_b32 s28, v1",["v1"],[])
    g.salu("s_and_b32 s3, s2, 7")
    g.salu("s_lshr_b32 s29, s2, 6")
    g.salu("s_lshl_b32 s29, s29, 3")
    g.salu("s_add_u32 s3, s3, s29")
    g.salu(f"s_mul_i32 s29, s3, {HEADB}")
    g.salu("s_bfe_u32 s33, s2, 0x30003")
    g.salu("s_mul_i32 s33, s33, 14336")
    g.salu("s_add_u32 s33, s33, s29")
    g.valu(f"v_and_b32 v{vT}, 31, v{vLANE}",R(vLANE),R(vT))
    g.valu(f"v_lshrrev_b32 v{vT+1}, 5, v{vLANE}",R(vLANE),R(vT+1))
    g.valu(f"v_mul_u32_u24 v{vT}, 56, v{vT}",R(vT),R(vT))
    g.valu(f"v_mad_u32_u24 v{vQO}, v{vT+1}, 24, v{vT}",R(vT,2),R(vQO))
    g.salu("s_and_b32 s35, s28, 3")
    g.salu("s_lshr_b32 s36, s28, 2")
    g.salu("s_mul_i32 s35, s35, 3584")
    g.salu(f"s_mul_i32 s37, s36, {TILE}")
    g.salu("s_add_u32 s38, s35, s37")
    g.salu(f"s_xor_b32 s37, s37, {TILE}")
    g.salu("s_add_u32 s37, s35, s37")
    g.salu("s_and_b32 s39, s28, 1")
    g.salu("s_mul_i32 s39, s39, 3072")
    g.valu(f"v_lshl_add_u32 v{vD}, v{vLANE}, 4, s39",R(vLANE),R(vD))
    g.salu(f"s_mul_i32 s34, s36, {BLK}")
    g.salu("s_add_u32 s31, s34, s39")
    g.salu("s_mov_b32 s14, 14336")
    g.salu("s_mov_b32 s15, 0x20000")
    g.salu(f"s_mov_b32 s18, {HEADB}")
    g.salu("s_mov_b32 s19, 0x20000")
    g.salu("s_bitcmp1_b32 s28, 1")
    g.salu(f"s_cselect_b32 s40, {VRING}, {KRING}")
    g.salu("s_add_u32 s31, s31, s40")
    g.wait(lgkm=0)
    g.stamp(1)
    g.salu("s_add_u32 s12, s4, s33")
    g.salu("s_addc_u32 s13, s5, 0")
    for t,so in((0,"s37"),(1,"s38")):
        for k in range(2):
            g.raw(f"buffer_load_dwordx4 {vr(vQ+8*t+4*k,4)}, v{vQO}, s[12:15], {so} offen offset:{16*k}","vmem",R(vQO),R(vQ+8*t+4*k,4),load=True)
    g.salu("s_bitcmp1_b32 s28, 1")
    g.salu("s_cselect_b32 s16, s8, s6")
    g.salu("s_cselect_b32 s17, s9, s7")
    g.salu("s_add_u32 s16, s16, s29")
    g.salu("s_addc_u32 s17, s17, 0")
    for pg in range(2):
        dma_setup(g,pg)
        for k in range(4): dma_piece(g,k)
    g.stamp(2)
    g.salu("s_add_u32 s20, s10, s33")
    g.salu("s_addc_u32 s21, s11, 0")
    g.salu("s_mov_b32 s22, 14336")
    g.salu("s_mov_b32 s23, 0x20000")
    g.valu(f"v_mov_b32 v{vT+2}, 0x3f803f80",[],R(vT+2))
    g.valu(f"v_mov_b32 v{vT+3}, 0x3f803f80",[],R(vT+3))
    g.valu(f"v_lshlrev_b32 v{vT+4}, 3, v0",["v0"],R(vT+4))
    g.valu(f"v_add_u32 v{vT+4}, {ONES}, v{vT+4}",R(vT+4),R(vT+4))
    g.dswrite("ds_write_b64",vT+4,vT+2,2,0)
    g.salu("s_mul_i32 s41, s36, 3584")
    g.valu(f"v_add_u32 v{vK}, s41, v{vQO}",R(vQO),R(vK))
    g.valu(f"v_lshl_add_u32 v{vOUT}, v{vT+1}, 5, v{vT}",R(vT,2),R(vOUT))
    g.salu(f"s_add_u32 s41, s41, {VRING}")
    g.valu(f"v_bfe_u32 v{vT+5}, v{vLANE}, 2, 2",R(vLANE),R(vT+5))
    g.valu(f"v_lshl_add_u32 v{vT+5}, v{vT+1}, 3, v{vT+5}",R(vT+1)+R(vT+5),R(vT+5))
    g.valu(f"v_mul_u32_u24 v{vT+5}, 56, v{vT+5}",R(vT+5),R(vT+5))
    g.valu(f"v_and_b32 v{vT+6}, 16, v{vLANE}",R(vLANE),R(vT+6))
    g.valu(f"v_add3_u32 v{vT+5}, v{vT+5}, v{vT+6}, s41",R(vT+5,2),R(vT+5))
    g.valu(f"v_and_b32 v{vT+6}, 2, v{vLANE}",R(vLANE),R(vT+6))
    g.valu(f"v_lshl_add_u32 v{vT+5}, v{vT+6}, 2, v{vT+5}",R(vT+5,2),R(vT+5))
    g.valu(f"v_and_b32 v{vT+6}, 1, v{vLANE}",R(vLANE),R(vT+6))
    g.valu(f"v_lshl_add_u32 v{vT+5}, v{vT+6}, 5, v{vT+5}",R(vT+5,2),R(vT+5))
    g.valu(f"v_and_b32 v{vT+6}, 0x13, v{vLANE}",R(vLANE),R(vT+6))
    g.valu(f"v_cmp_eq_u32 vcc, 0x13, v{vT+6}",R(vT+6),[])
    g.valu(f"v_lshlrev_b32 v{vT+7}, 6, v{vT+1}",R(vT+1),R(vT+7))
    g.valu(f"v_sub_u32 v{vT+7}, {ONES+224}, v{vT+7}",R(vT+7),R(vT+7))
    g.valu(f"v_mov_b32 v{vT+8}, {BLK}",[],R(vT+8))
    g.valu(f"v_cndmask_b32 v{vVA}, v{vT+5}, v{vT+7}, vcc",R(vT+5)+R(vT+7),R(vVA))
    g.valu(f"v_cndmask_b32 v{vT+8}, v{vT+8}, 0, vcc".replace(f"v{vT+8}, 0, vcc","v%d, 0, vcc"%(vT+8)),R(vT+8),R(vT+8))
    for k in range(1,NSLOT):
        g.valu(f"v_add_u32 v{vVA+k}, v{vVA+k-1}, v{vT+8}",R(vVA+k-1)+R(vT+8),R(vVA+k))
    g.valu(f"v_mov_b32 v{vIDX}, 0xdddddddd",[],R(vIDX))
    for k in range(32): g.valu(f"v_mov_b32 v{vO+k}, 0",[],R(vO+k))
    g.valu(f"v_mov_b32 v{vT+10}, 0x{f2u(CSC):08x}",[],R(vT+10))
    g.valu(f"v_mov_b32 v{vT+11}, 0x{f2u(CSC):08x}",[],R(vT+11))
    g.valu(f"v_cmp_eq_u32 vcc, 0, v{vT+1}",R(vT+1),[])
    g.valu(f"v_mov_b32 v{vT+14}, 0xffff0000",[],R(vT+14))
    g.nop(0)
    g.valu(f"v_cndmask_b32 v{vT+12}, 0, v{vT+10}, vcc",R(vT+10),R(vT+12))
    g.valu(f"v_cndmask_b32 v{vT+13}, 0, v{vT+10}, vcc",R(vT+10),R(vT+13))
    for k in range(16):
        if k%4==0: g.wait(vm=8+3-k//4)
        r=vQ+k; t=vT+16+2*(k&3)
        cc=vT+12 if (k&7)<2 else vT+10
        g.valu(f"v_lshlrev_b32 v{t}, 16, v{r}",R(r),R(t))
        g.valu(f"v_and_b32 v{t+1}, v{vT+14}, v{r}",R(r)+R(vT+14),R(t+1))
        g.valu(f"v_pk_mul_f32 {vr(t,2)}, {vr(t,2)}, {vr(cc,2)}",R(t,2)+R(cc,2),R(t,2))
        g.valu(f"v_cvt_pk_bf16_f32 v{r}, v{t}, v{t+1}",R(t,2),R(r))
    g.stamp(3)
    g.wait(vm=4,lgkm=0)
    g.raw("s_barrier","salu")
    g.stamp(4)
    for rho in range(4): kread(g,0,rho)
    for rho in range(4): kread(g,1,rho)
    for i in range(4): vread(g,0,i)
    g.need(R(KF(0),4)); M1(g,0)
    g.need(R(KF(0)+4,4)); M2(g,0)
    g.nop(11)
    dma_at={1:2,3:3,12:4,28:5,30:6,36:7}
    sync_before={4:8,12:0,28:0,36:0,52:0}
    NU=64
    for u in range(NU):
        g.comment(f"slot {u}")
        j=u>>1
        E=[S(u)+k for k in range(16)]
        reads=[]
        if u%2==0 and j+2<32: reads=[lambda r=r: kread(g,j+2,r) for r in range(4)]
        if u%2==1 and j+1<32: reads=[lambda i=i: vread(g,j+1,i) for i in range(4)]
        dmas=[]
        if u in dma_at:
            dmas=[lambda k=k: dma_piece(g,k) for k in range(4)]
        def after(k):
            if dmas:
                if k==0: dma_setup(g,dma_at[u])
                dmas[k]()
            if reads: reads[k]()
        if u==0:
            for k in (0,1,2): g.exp(E[k])
            M1(g,1)
            for k in (3,4,5): g.exp(E[k])
            M2(g,1); after(0)
            g.need(R(KF(1),8))
            for k in (6,7,8): g.exp(E[k])
            M1(g,2); after(1)
            for k in (9,10,11): g.exp(E[k])
            M2(g,2); g.need(R(VF(0),8)); after(2)
            for k in (12,13): g.exp(E[k])
            P1(g,0); after(3)
            for k in (14,15): g.exp(E[k])
            continue
        if u+2<NU:
            M1(g,u+2); after(0)
            for k in range(0,4): g.exp(E[k])
            M2(g,u+2); after(1)
            for k in range(4,8): g.exp(E[k])
            P2(g,u-1)
            if u%2==0: g.need(R(VF(j),8))
            after(2)
            for k in range(8,12): g.exp(E[k])
            P1(g,u)
            if u%2==1 and (u+3)<NU: g.need(R(KF((u+3)>>1),8))
            after(3)
            if (u+1) in sync_before:
                g.wait(vm=sync_before[u+1]); g.raw("s_barrier","salu")
            for k in range(12,16): g.exp(E[k])
        else:
            for k in range(0,2): g.exp(E[k])
            P2(g,u-1)
            if u%2==0: g.need(R(VF(j),8))
            for k in range(2,10): g.exp(E[k])
            P1(g,u)
            for k in range(10,16): g.exp(E[k])
    g.stamp(5)
    g.salu("s_lshl_b32 s41, s28, 12")
    g.salu(f"s_add_u32 s41, s41, {XCH}")
    P2(g,NU-1)
    g.valu(f"v_lshl_add_u32 v{vT}, v{vLANE}, 4, s41",R(vLANE),R(vT))
    g.salu("s_xor_b32 s41, s28, 4")
    g.salu("s_lshl_b32 s41, s41, 12")
    g.salu(f"s_add_u32 s41, s41, {XCH}")
    g.valu(f"v_lshl_add_u32 v{vT+1}, v{vLANE}, 4, s41",R(vLANE),R(vT+1))
    for k in range(4): g.dswrite("ds_write_b128",vT,vO+4*k,4,1024*k)
    g.wait(lgkm=0)
    g.raw("s_barrier","salu")
    for k in range(4): g.ldsread("ds_read_b128",vS+4*k,4,vT+1,1024*k)
    A=vO+16
    for k in (3,0,1,2):
        pass
    g.need(R(vS,16))
    g.valu(f"v_add_f32 v{A+12}, v{A+12}, v{vS+12}",R(A+12)+R(vS+12),R(A+12))
    g.valu(f"v_add_f32 v{A+13}, v{A+13}, v{vS+13}",R(A+13)+R(vS+13),R(A+13))
    g.valu(f"v_mov_b32 v{vT+2}, v{A+12}",R(A+12),R(vT+2))
    g.valu(f"v_mov_b32 v{vT+3}, v{A+12}",R(A+12),R(vT+3))
    for k in (0,1): g.valu(f"v_add_f32 v{A+k}, v{A+k}, v{vS+k}",R(A+k)+R(vS+k),R(A+k))
    g.valu(f"v_permlane32_swap_b32 v{vT+2}, v{vT+3}",R(vT+2,2),R(vT+2,2))
    for k in list(range(2,12))+[14,15]: g.valu(f"v_add_f32 v{A+k}, v{A+k}, v{vS+k}",R(A+k)+R(vS+k),R(A+k))
    g.label("L_final")
    g.valu(f"v_rcp_f32 v{vT+4}, v{vT+3}",R(vT+3),R(vT+4),trans=True)
    g.valu(f"v_mov_b32 v{vT+5}, 0",[],R(vT+5))
    for k in range(16): g.valu(f"v_mul_f32 v{A+k}, v{A+k}, v{vT+4}",R(A+k)+R(vT+4),R(A+k))
    if not opt.get("nocheck"):
        g.valu(f"v_mov_b32 v{vT+6}, 0",[],R(vT+6))
        for k in range(16): g.valu(f"v_fmac_f32 v{vT+5}, v{A+k}, v{vT+6}",R(A+k)+R(vT+5,2),R(vT+5))
        g.valu(f"v_add_f32 v{vT+5}, v{vT+5}, v{vT+3}",R(vT+5)+R(vT+3),R(vT+5))
        g.valu(f"v_cmp_le_f32 vcc, 1.0, v{vT+5}",R(vT+5),[])
        g.valu(f"v_cmp_ge_f32 s[42:43], s44, v{vT+5}",R(vT+5),[])
    for k in range(8): g.valu(f"v_cvt_pk_bf16_f32 v{vS+k}, v{A+2*k}, v{A+2*k+1}",R(A+2*k,2),R(vS+k))
    if not opt.get("nocheck"):
        g.salu("s_and_b64 vcc, vcc, s[42:43]")
        g.salu("s_or_b64 vcc, vcc, s[46:47]")
        g.salu("s_cmp_eq_u64 vcc, -1")
        g.salu("s_cbranch_scc0 L_slow")
    g.raw(f"buffer_store_dwordx4 {vr(vS,4)}, v{vOUT}, s[20:23], s38 offen","vmem",R(vS,4)+R(vOUT),[],load=False)
    g.raw(f"buffer_store_dwordx2 {vr(vS+4,2)}, v{vOUT}, s[20:23], s38 offen offset:16","vmem",R(vS+4,2)+R(vOUT),[],load=False)
    g.salu("s_mov_b32 exec_hi, 0")
    g.raw(f"buffer_store_dwordx2 {vr(vS+6,2)}, v{vOUT}, s[20:23], s38 offen offset:24","vmem",R(vS+6,2)+R(vOUT),[],load=False)
    if opt.get("stamps"):
        g.salu("s_mov_b64 exec, -1")
        g.stamp(6)
        g.wait(vm=0)
        g.stamp(7)
        g.salu("s_load_dwordx2 s[50:51], s[0:1], 0x28")
        g.wait(lgkm=0)
        g.valu("v_mov_b32 v1, 0",[],["v1"])
        for k in range(8): g.raw(f"v_writelane_b32 v1, s{60+2*k}, {k}","valu")
        g.salu("s_getreg_b32 s52, hwreg(HW_REG_HW_ID)")
        g.raw(f"v_writelane_b32 v1, s52, 8","valu")
        g.salu("s_getreg_b32 s52, hwreg(HW_REG_XCC_ID)")
        g.raw(f"v_writelane_b32 v1, s52, 9","valu")
        g.salu("s_lshl_b32 s52, s2, 3")
        g.salu("s_add_u32 s52, s52, s28")
        g.salu("s_lshl_b32 s52, s52, 8")
        g.valu(f"v_lshl_add_u32 v0, v{vLANE}, 2, s52",R(vLANE),["v0"])
        g.raw("global_store_dword v0, v1, s[50:51]","vmem")
    g.label("L_end")
    g.raw("s_endpgm","salu")
    errs=g.check()
    sl=slow_path(opt)
    return g, sl, errs

def slow_path(opt):
    g=G({})
    A=vO+16; Qr=vQ+8; KFr=vKF; VFr=vV; Sr=vS; m=vT+8;
    g.label("L_slow")
    g.salu("s_mov_b64 s[46:47], -1")
    g.salu("s_add_u32 s16, s6, s29"); g.salu("s_addc_u32 s17, s7, 0")
    g.salu("s_add_u32 s24, s8, s29"); g.salu("s_addc_u32 s25, s9, 0")
    g.salu(f"s_mov_b32 s26, {HEADB}"); g.salu("s_mov_b32 s27, 0x20000")
    g.salu("s_lshl_b32 s48, s28, 12")
    g.valu(f"v_lshlrev_b32 v{vD}, 4, v{vLANE}",R(vLANE),R(vD))
    g.valu(f"v_add_u32 v{vK}, s48, v{vQO}",R(vQO),R(vK))
    g.salu("s_mul_i32 s41, s36, 3584")
    g.salu(f"s_add_u32 s41, s41, {VRING-2048}")
    g.salu("s_sub_u32 s41, s48, s41")
    g.valu(f"v_add_u32 v{vT+9}, s41, v{vVA}",R(vVA),R(vT+9))
    g.valu(f"v_and_b32 v{vT+10}, 0x13, v{vLANE}",R(vLANE),R(vT+10))
    g.valu(f"v_cmp_eq_u32 vcc, 0x13, v{vT+10}",R(vT+10),[])
    g.nop(1)
    g.valu(f"v_cndmask_b32 v{vT+9}, v{vT+9}, v{vVA}, vcc",R(vT+9)+R(vVA),R(vT+9))
    g.valu(f"v_cmp_gt_u32 vcc, 32, v{vLANE}",R(vLANE),[])
    g.nop(1)
    g.valu(f"v_cndmask_b32 v{vT+11}, 0, -1, vcc",[],R(vT+11))
    for k in range(16): g.valu(f"v_mov_b32 v{A+k}, 0",[],R(A+k))
    g.valu(f"v_mov_b32 v{m}, 0xff7fffff",[],R(m))
    g.salu("s_mov_b32 s30, 0")
    g.label("L_slow_loop")
    g.salu("s_mov_b32 m0, s48")
    g.nop(0)
    for k in range(2): g.raw(f"buffer_load_dwordx4 v{vD}, s[16:19], s30 offen offset:{1024*k} lds","vmem",R(vD),[],load=False)
    g.salu("s_add_u32 m0, s48, 2048")
    g.nop(0)
    for k in range(2): g.raw(f"buffer_load_dwordx4 v{vD}, s[24:27], s30 offen offset:{1024*k} lds","vmem",R(vD),[],load=False)
    g.wait(vm=0)
    for rho in range(4): g.dsread("ds_read_b64",KFr+2*rho,2,vK,8*rho)
    for i in range(4): g.dsread("ds_read_b64_tr_b16",VFr+2*i,2,vT+9,[0,224,896,1120][i])
    g.wait(lgkm=0)
    for k in range(2): g.valu(f"v_and_b32 v{KFr+k}, v{KFr+k}, v{vT+11}",R(KFr+k)+R(vT+11),R(KFr+k))
    g.nop(1)
    g.mfma(Sr,KFr,Qr,None); g.mfma(Sr,KFr+4,Qr+4,Sr)
    g.nop(11)
    t=vT+12
    g.valu(f"v_max3_f32 v{t}, v{Sr}, v{Sr+1}, v{m}",R(Sr,2)+R(m),R(t))
    for k in range(1,8): g.valu(f"v_max3_f32 v{t}, v{Sr+2*k}, v{Sr+2*k+1}, v{t}",R(Sr+2*k,2)+R(t),R(t))
    g.valu(f"v_mov_b32 v{t+1}, v{t}",R(t),R(t+1))
    g.nop(1)
    g.valu(f"v_permlane32_swap_b32 v{t}, v{t+1}",R(t,2),R(t,2))
    g.nop(1)
    g.valu(f"v_max_f32 v{t}, v{t}, v{t+1}",R(t,2),R(t))
    g.valu(f"v_sub_f32 v{t+1}, v{m}, v{t}",R(m)+R(t),R(t+1))
    g.valu(f"v_exp_f32 v{t+1}, v{t+1}",R(t+1),R(t+1),trans=True)
    g.valu(f"v_mov_b32 v{m}, v{t}",R(t),R(m))
    for k in range(16): g.valu(f"v_sub_f32 v{Sr+k}, v{Sr+k}, v{t}",R(Sr+k)+R(t),R(Sr+k))
    for k in range(16): g.exp(Sr+k)
    for k in range(16): g.valu(f"v_mul_f32 v{A+k}, v{A+k}, v{t+1}",R(A+k)+R(t+1),R(A+k))
    g.nop(1)
    g.smfmac(A,VFr,Sr,vIDX); g.smfmac(A,VFr+4,Sr+8,vIDX)
    g.nop(11)
    g.salu(f"s_add_u32 s30, s30, {TILE}")
    g.salu(f"s_cmp_lt_u32 s30, {HEADB}")
    g.salu("s_cbranch_scc1 L_slow_loop")
    g.valu(f"v_mov_b32 v{vT+2}, v{A+12}",R(A+12),R(vT+2))
    g.valu(f"v_mov_b32 v{vT+3}, v{A+12}",R(A+12),R(vT+3))
    g.nop(1)
    g.valu(f"v_permlane32_swap_b32 v{vT+2}, v{vT+3}",R(vT+2,2),R(vT+2,2))
    g.nop(1)
    g.salu("s_branch L_final")
    e=g.check()
    if e: print("slow path errs:",e,file=sys.stderr)
    return g

HDR=f"""; Fused attention, B*H=32 heads, S=2048, Dh=28 (bf16).
; @launch grid=(256,1,1) block=(512,1,1) lds={LDS}
.amdgcn_target "amdgcn-amd-amdhsa--gfx950"
.text
.globl {NAME}_kernel
.p2align 8
.type {NAME}_kernel,@function
{NAME}_kernel:
"""
FTR=f""".section .rodata,"a"
.p2align 6
.amdhsa_kernel {NAME}_kernel
  .amdhsa_next_free_vgpr {NV}
  .amdhsa_next_free_sgpr 96
  .amdhsa_accum_offset {NV}
  .amdhsa_group_segment_fixed_size 0
  .amdhsa_kernarg_size 48
  .amdhsa_user_sgpr_count 2
  .amdhsa_user_sgpr_kernarg_segment_ptr 1
  .amdhsa_system_sgpr_workgroup_id_x 1
.end_amdhsa_kernel
"""
if __name__=="__main__":
    opt={}
    out=sys.argv[1]
    for a in sys.argv[2:]:
        k,_,v=a.partition("="); opt[k]=v or 1
    g,sl,errs=build(opt)
    for e in errs: print("HAZARD:",e,file=sys.stderr)
    txt=g.text().replace("    s_mov_b32 s22, 14336\n","    s_mov_b32 s22, 14336\n    s_mov_b32 s44, 0x5f800000\n    s_mov_b64 s[46:47], 0\n")
    open(out,"w").write(HDR+txt+sl.text()+FTR)
```

```python
import sys, math, struct
from asmlib import *

NAME="standalone__fused_io_aware_attn__prompt"
HEADB=114688; BLK=7168; TILE=1792
KRING=0; NSLOT=8; VRING=NSLOT*BLK; ONES=2*NSLOT*BLK; XCH=ONES+4096; LDS=XCH+32768
def f2u(x): return struct.unpack("<I",struct.pack("<f",x))[0]
CSC=math.log2(math.e)/math.sqrt(28.0)

vLANE=2; vK=3; vD=4; vQO=5
vVA=6
vOUT=14; vIDX=15
vV=16
vQ=32
vKF=48
vS=64
vO=128
vT=160
NV=192

class G(Prog):
    def __init__(s, opt):
        super().__init__(); s.opt=opt; s.q=[]
    def ldsread(s, op, d, n, addr, off):
        s.dsread(op,d,n,addr,off); s.q.append(set(R(d,n)))
    def need(s, regs):
        regs=set(regs); last=-1
        for k,x in enumerate(s.q):
            if x&regs: last=k
        if last>=0:
            n=len(s.q)-1-last
            s.wait(lgkm=n); s.q=s.q[last+1:]
    def stamp(s, k):
        if s.opt.get("stamps"):
            s.raw(f"s_memtime s[{60+2*k}:{61+2*k}]","salu")

def S(u): return vS+16*(u&3)
def O(u): return vO+16*(u&1)
def Q(u): return vQ+8*(u&1)
def KF(j): return vKF+8*(j&1)
def VF(j): return vV+8*(j&1)

def kread(g,j,rho):
    n=j>>1; kt=j&1
    g.ldsread("ds_read_b64", KF(j)+2*rho, 2, vK, KRING+(n%NSLOT)*BLK+kt*TILE+8*rho)
def vread(g,j,i):
    n=j>>1; kt=j&1
    g.ldsread("ds_read_b64_tr_b16", VF(j)+2*i, 2, vVA+(n%NSLOT), kt*TILE+[0,224,896,1120][i])
def M1(g,u): g.mfma(S(u), KF(u>>1), Q(u), None)
def M2(g,u): g.mfma(S(u), KF(u>>1)+4, Q(u)+4, S(u))
def P1(g,u): g.smfmac(O(u), VF(u>>1), S(u), vIDX)
def P2(g,u): g.smfmac(O(u), VF(u>>1)+4, S(u)+8, vIDX)

def dma_setup(g,pg):
    g.salu(f"s_add_u32 m0, s31, {(pg%(NSLOT//2))*2*BLK}")
    g.salu(f"s_add_u32 s30, s34, {pg*2*BLK}")
def dma_piece(g,k):
    g.raw(f"buffer_load_dwordx4 v{vD}, s[16:19], s30 offen offset:{1024*k} lds","vmem",R(vD),[],load=False)

def build(opt):
    g=G(opt)
    g.salu("s_cmp_ge_u32 s2, 0x100")
    g.salu("s_cbranch_scc1 L_end")
    g.salu("s_load_dwordx8 s[4:11], s[0:1], 0x0")
    g.stamp(0)
    g.valu("v_lshrrev_b32 v1, 6, v0",["v0"],["v1"])
    g.valu(f"v_and_b32 v{vLANE}, 63, v0",["v0"],R(vLANE))
    g.valu("v_readfirstlane_b32 s28, v1",["v1"],[])
    g.salu("s_and_b32 s3, s2, 7")
    g.salu("s_lshr_b32 s29, s2, 6")
    g.salu("s_lshl_b32 s29, s29, 3")
    g.salu("s_add_u32 s3, s3, s29")
    g.salu(f"s_mul_i32 s29, s3, {HEADB}")
    g.salu("s_bfe_u32 s33, s2, 0x30003")
    g.salu("s_mul_i32 s33, s33, 14336")
    g.salu("s_add_u32 s33, s33, s29")
    g.valu(f"v_and_b32 v{vT}, 31, v{vLANE}",R(vLANE),R(vT))
    g.valu(f"v_lshrrev_b32 v{vT+1}, 5, v{vLANE}",R(vLANE),R(vT+1))
    g.valu(f"v_mul_u32_u24 v{vT}, 56, v{vT}",R(vT),R(vT))
    g.valu(f"v_mad_u32_u24 v{vQO}, v{vT+1}, 24, v{vT}",R(vT,2),R(vQO))
    g.salu("s_and_b32 s35, s28, 3")
    g.salu("s_lshr_b32 s36, s28, 2")
    g.salu("s_mul_i32 s35, s35, 3584")
    g.salu(f"s_mul_i32 s37, s36, {TILE}")
    g.salu("s_add_u32 s38, s35, s37")
    g.salu(f"s_xor_b32 s37, s37, {TILE}")
    g.salu("s_add_u32 s37, s35, s37")
    g.salu("s_and_b32 s39, s28, 1")
    g.salu("s_mul_i32 s39, s39, 3072")
    g.valu(f"v_lshl_add_u32 v{vD}, v{vLANE}, 4, s39",R(vLANE),R(vD))
    g.salu(f"s_mul_i32 s34, s36, {BLK}")
    g.salu("s_add_u32 s31, s34, s39")
    g.salu("s_mov_b32 s14, 14336")
    g.salu("s_mov_b32 s15, 0x20000")
    g.salu(f"s_mov_b32 s18, {HEADB}")
    g.salu("s_mov_b32 s19, 0x20000")
    g.salu("s_bitcmp1_b32 s28, 1")
    g.salu(f"s_cselect_b32 s40, {VRING}, {KRING}")
    g.salu("s_add_u32 s31, s31, s40")
    g.wait(lgkm=0)
    g.stamp(1)
    g.salu("s_add_u32 s12, s4, s33")
    g.salu("s_addc_u32 s13, s5, 0")
    for t,so in((0,"s37"),(1,"s38")):
        for k in range(2):
            g.raw(f"buffer_load_dwordx4 {vr(vQ+8*t+4*k,4)}, v{vQO}, s[12:15], {so} offen offset:{16*k}","vmem",R(vQO),R(vQ+8*t+4*k,4),load=True)
    g.salu("s_bitcmp1_b32 s28, 1")
    g.salu("s_cselect_b32 s16, s8, s6")
    g.salu("s_cselect_b32 s17, s9, s7")
    g.salu("s_add_u32 s16, s16, s29")
    g.salu("s_addc_u32 s17, s17, 0")
    for pg in range(2):
        dma_setup(g,pg)
        for k in range(4): dma_piece(g,k)
    g.stamp(2)
    g.salu("s_add_u32 s20, s10, s33")
    g.salu("s_addc_u32 s21, s11, 0")
    g.salu("s_mov_b32 s22, 14336")
    g.salu("s_mov_b32 s23, 0x20000")
    g.valu(f"v_mov_b32 v{vT+2}, 0x3f803f80",[],R(vT+2))
    g.valu(f"v_mov_b32 v{vT+3}, 0x3f803f80",[],R(vT+3))
    g.valu(f"v_lshlrev_b32 v{vT+4}, 3, v0",["v0"],R(vT+4))
    g.valu(f"v_add_u32 v{vT+4}, {ONES}, v{vT+4}",R(vT+4),R(vT+4))
    g.dswrite("ds_write_b64",vT+4,vT+2,2,0)
    g.salu("s_mul_i32 s41, s36, 3584")
    g.valu(f"v_add_u32 v{vK}, s41, v{vQO}",R(vQO),R(vK))
    g.valu(f"v_lshl_add_u32 v{vOUT}, v{vT+1}, 5, v{vT}",R(vT,2),R(vOUT))
    g.salu(f"s_add_u32 s41, s41, {VRING}")
    g.valu(f"v_bfe_u32 v{vT+5}, v{vLANE}, 2, 2",R(vLANE),R(vT+5))
    g.valu(f"v_lshl_add_u32 v{vT+5}, v{vT+1}, 3, v{vT+5}",R(vT+1)+R(vT+5),R(vT+5))
    g.valu(f"v_mul_u32_u24 v{vT+5}, 56, v{vT+5}",R(vT+5),R(vT+5))
    g.valu(f"v_and_b32 v{vT+6}, 16, v{vLANE}",R(vLANE),R(vT+6))
    g.valu(f"v_add3_u32 v{vT+5}, v{vT+5}, v{vT+6}, s41",R(vT+5,2),R(vT+5))
    g.valu(f"v_and_b32 v{vT+6}, 2, v{vLANE}",R(vLANE),R(vT+6))
    g.valu(f"v_lshl_add_u32 v{vT+5}, v{vT+6}, 2, v{vT+5}",R(vT+5,2),R(vT+5))
    g.valu(f"v_and_b32 v{vT+6}, 1, v{vLANE}",R(vLANE),R(vT+6))
    g.valu(f"v_lshl_add_u32 v{vT+5}, v{vT+6}, 5, v{vT+5}",R(vT+5,2),R(vT+5))
    g.valu(f"v_and_b32 v{vT+6}, 0x13, v{vLANE}",R(vLANE),R(vT+6))
    g.valu(f"v_cmp_eq_u32 vcc, 0x13, v{vT+6}",R(vT+6),[])
    g.valu(f"v_lshlrev_b32 v{vT+7}, 6, v{vT+1}",R(vT+1),R(vT+7))
    g.valu(f"v_sub_u32 v{vT+7}, {ONES+224}, v{vT+7}",R(vT+7),R(vT+7))
    g.valu(f"v_mov_b32 v{vT+8}, {BLK}",[],R(vT+8))
    g.valu(f"v_cndmask_b32 v{vVA}, v{vT+5}, v{vT+7}, vcc",R(vT+5)+R(vT+7),R(vVA))
    g.valu(f"v_cndmask_b32 v{vT+8}, v{vT+8}, 0, vcc".replace(f"v{vT+8}, 0, vcc","v%d, 0, vcc"%(vT+8)),R(vT+8),R(vT+8))
    for k in range(1,NSLOT):
        g.valu(f"v_add_u32 v{vVA+k}, v{vVA+k-1}, v{vT+8}",R(vVA+k-1)+R(vT+8),R(vVA+k))
    g.valu(f"v_mov_b32 v{vIDX}, 0xdddddddd",[],R(vIDX))
    for k in range(32): g.valu(f"v_mov_b32 v{vO+k}, 0",[],R(vO+k))
    g.valu(f"v_mov_b32 v{vT+10}, 0x{f2u(CSC):08x}",[],R(vT+10))
    g.valu(f"v_mov_b32 v{vT+11}, 0x{f2u(CSC):08x}",[],R(vT+11))
    g.valu(f"v_cmp_eq_u32 vcc, 0, v{vT+1}",R(vT+1),[])
    g.valu(f"v_mov_b32 v{vT+14}, 0xffff0000",[],R(vT+14))
    g.nop(0)
    g.valu(f"v_cndmask_b32 v{vT+12}, 0, v{vT+10}, vcc",R(vT+10),R(vT+12))
    g.valu(f"v_cndmask_b32 v{vT+13}, 0, v{vT+10}, vcc",R(vT+10),R(vT+13))
    for k in range(16):
        if k%4==0: g.wait(vm=8+3-k//4)
        r=vQ+k; t=vT+16+2*(k&3)
        cc=vT+12 if (k&7)<2 else vT+10
        g.valu(f"v_lshlrev_b32 v{t}, 16, v{r}",R(r),R(t))
        g.valu(f"v_and_b32 v{t+1}, v{vT+14}, v{r}",R(r)+R(vT+14),R(t+1))
        g.valu(f"v_pk_mul_f32 {vr(t,2)}, {vr(t,2)}, {vr(cc,2)}",R(t,2)+R(cc,2),R(t,2))
        g.valu(f"v_cvt_pk_bf16_f32 v{r}, v{t}, v{t+1}",R(t,2),R(r))
    g.stamp(3)
    g.wait(vm=4,lgkm=0)
    g.raw("s_barrier","salu")
    g.stamp(4)
    for rho in range(4): kread(g,0,rho)
    for rho in range(4): kread(g,1,rho)
    for i in range(4): vread(g,0,i)
    g.need(R(KF(0),4)); M1(g,0)
    g.need(R(KF(0)+4,4)); M2(g,0)
    g.nop(11)
    dma_at={1:2,3:3,12:4,28:5,30:6,36:7}
    sync_before={4:8,12:0,28:0,36:0,52:0}
    NU=64
    for u in range(NU):
        g.comment(f"slot {u}")
        j=u>>1
        E=[S(u)+k for k in range(16)]
        reads=[]
        if u%2==0 and j+2<32: reads=[lambda r=r: kread(g,j+2,r) for r in range(4)]
        if u%2==1 and j+1<32: reads=[lambda i=i: vread(g,j+1,i) for i in range(4)]
        dmas=[]
        if u in dma_at:
            dmas=[lambda k=k: dma_piece(g,k) for k in range(4)]
        def after(k):
            if dmas:
                if k==0: dma_setup(g,dma_at[u])
                dmas[k]()
            if reads: reads[k]()
        if u==0:
            for k in (0,1,2): g.exp(E[k])
            M1(g,1)
            for k in (3,4,5): g.exp(E[k])
            M2(g,1); after(0)
            g.need(R(KF(1),8))
            for k in (6,7,8): g.exp(E[k])
            M1(g,2); after(1)
            for k in (9,10,11): g.exp(E[k])
            M2(g,2); g.need(R(VF(0),8)); after(2)
            for k in (12,13): g.exp(E[k])
            P1(g,0); after(3)
            for k in (14,15): g.exp(E[k])
            continue
        if u+2<NU:
            M1(g,u+2); after(0)
            for k in range(0,4): g.exp(E[k])
            M2(g,u+2); after(1)
            for k in range(4,8): g.exp(E[k])
            P2(g,u-1)
            if u%2==0: g.need(R(VF(j),8))
            after(2)
            for k in range(8,12): g.exp(E[k])
            P1(g,u)
            if u%2==1 and (u+3)<NU: g.need(R(KF((u+3)>>1),8))
            after(3)
            if (u+1) in sync_before:
                g.wait(vm=sync_before[u+1]); g.raw("s_barrier","salu")
            for k in range(12,16): g.exp(E[k])
        else:
            for k in range(0,2): g.exp(E[k])
            P2(g,u-1)
            if u%2==0: g.need(R(VF(j),8))
            for k in range(2,10): g.exp(E[k])
            P1(g,u)
            for k in range(10,16): g.exp(E[k])
    g.stamp(5)
    if opt.get("extra"):
        g.salu(f"s_mov_b32 s49, {int(opt['extra'])}")
        g.label("L_extra")
        for k in range(16): g.valu(f"v_exp_f32 v{vT+16+k}, v{vT+16+k}",[],[],trans=True)
        g.salu("s_sub_u32 s49, s49, 1")
        g.salu("s_cmp_lg_u32 s49, 0")
        g.salu("s_cbranch_scc1 L_extra")
    g.salu("s_lshl_b32 s41, s28, 12")
    g.salu(f"s_add_u32 s41, s41, {XCH}")
    P2(g,NU-1)
    g.valu(f"v_lshl_add_u32 v{vT}, v{vLANE}, 4, s41",R(vLANE),R(vT))
    g.salu("s_xor_b32 s41, s28, 4")
    g.salu("s_lshl_b32 s41, s41, 12")
    g.salu(f"s_add_u32 s41, s41, {XCH}")
    g.valu(f"v_lshl_add_u32 v{vT+1}, v{vLANE}, 4, s41",R(vLANE),R(vT+1))
    for k in range(4): g.dswrite("ds_write_b128",vT,vO+4*k,4,1024*k)
    g.wait(lgkm=0)
    g.raw("s_barrier","salu")
    for k in range(4): g.ldsread("ds_read_b128",vS+4*k,4,vT+1,1024*k)
    A=vO+16
    for k in (3,0,1,2):
        pass
    g.need(R(vS,16))
    g.valu(f"v_add_f32 v{A+12}, v{A+12}, v{vS+12}",R(A+12)+R(vS+12),R(A+12))
    g.valu(f"v_add_f32 v{A+13}, v{A+13}, v{vS+13}",R(A+13)+R(vS+13),R(A+13))
    g.valu(f"v_mov_b32 v{vT+2}, v{A+12}",R(A+12),R(vT+2))
    g.valu(f"v_mov_b32 v{vT+3}, v{A+12}",R(A+12),R(vT+3))
    for k in (0,1): g.valu(f"v_add_f32 v{A+k}, v{A+k}, v{vS+k}",R(A+k)+R(vS+k),R(A+k))
    g.valu(f"v_permlane32_swap_b32 v{vT+2}, v{vT+3}",R(vT+2,2),R(vT+2,2))
    for k in list(range(2,12))+[14,15]: g.valu(f"v_add_f32 v{A+k}, v{A+k}, v{vS+k}",R(A+k)+R(vS+k),R(A+k))
    g.label("L_final")
    g.valu(f"v_rcp_f32 v{vT+4}, v{vT+3}",R(vT+3),R(vT+4),trans=True)
    g.valu(f"v_mov_b32 v{vT+5}, 0",[],R(vT+5))
    for k in range(16): g.valu(f"v_mul_f32 v{A+k}, v{A+k}, v{vT+4}",R(A+k)+R(vT+4),R(A+k))
    if not opt.get("nocheck"):
        g.valu(f"v_mov_b32 v{vT+6}, 0",[],R(vT+6))
        for k in range(16): g.valu(f"v_fmac_f32 v{vT+5}, v{A+k}, v{vT+6}",R(A+k)+R(vT+5,2),R(vT+5))
        g.valu(f"v_add_f32 v{vT+5}, v{vT+5}, v{vT+3}",R(vT+5)+R(vT+3),R(vT+5))
        g.valu(f"v_cmp_le_f32 vcc, 1.0, v{vT+5}",R(vT+5),[])
        g.valu(f"v_cmp_ge_f32 s[42:43], s44, v{vT+5}",R(vT+5),[])
    for k in range(8): g.valu(f"v_cvt_pk_bf16_f32 v{vS+k}, v{A+2*k}, v{A+2*k+1}",R(A+2*k,2),R(vS+k))
    if not opt.get("nocheck"):
        g.salu("s_and_b64 vcc, vcc, s[42:43]")
        g.salu("s_or_b64 vcc, vcc, s[46:47]")
        g.salu("s_cmp_eq_u64 vcc, -1")
        g.salu("s_cbranch_scc0 L_slow")
    g.raw(f"buffer_store_dwordx4 {vr(vS,4)}, v{vOUT}, s[20:23], s38 offen","vmem",R(vS,4)+R(vOUT),[],load=False)
    g.raw(f"buffer_store_dwordx2 {vr(vS+4,2)}, v{vOUT}, s[20:23], s38 offen offset:16","vmem",R(vS+4,2)+R(vOUT),[],load=False)
    g.salu("s_mov_b32 exec_hi, 0")
    g.raw(f"buffer_store_dwordx2 {vr(vS+6,2)}, v{vOUT}, s[20:23], s38 offen offset:24","vmem",R(vS+6,2)+R(vOUT),[],load=False)
    if opt.get("stamps"):
        g.salu("s_mov_b64 exec, -1")
        g.stamp(6)
        g.wait(vm=0)
        g.stamp(7)
        g.salu("s_load_dwordx2 s[50:51], s[0:1], 0x28")
        g.wait(lgkm=0)
        g.valu("v_mov_b32 v1, 0",[],["v1"])
        for k in range(8): g.raw(f"v_writelane_b32 v1, s{60+2*k}, {k}","valu")
        g.salu("s_getreg_b32 s52, hwreg(HW_REG_HW_ID)")
        g.raw(f"v_writelane_b32 v1, s52, 8","valu")
        g.salu("s_getreg_b32 s52, hwreg(HW_REG_XCC_ID)")
        g.raw(f"v_writelane_b32 v1, s52, 9","valu")
        g.salu("s_lshl_b32 s52, s2, 3")
        g.salu("s_add_u32 s52, s52, s28")
        g.salu("s_lshl_b32 s52, s52, 8")
        g.valu(f"v_lshl_add_u32 v0, v{vLANE}, 2, s52",R(vLANE),["v0"])
        g.raw("global_store_dword v0, v1, s[50:51]","vmem")
    g.label("L_end")
    g.raw("s_endpgm","salu")
    errs=g.check()
    sl=slow_path(opt)
    return g, sl, errs

def slow_path(opt):
    g=G({})
    A=vO+16; Qr=vQ+8; KFr=vKF; VFr=vV; Sr=vS; m=vT+8;
    g.label("L_slow")
    g.salu("s_mov_b64 s[46:47], -1")
    g.salu("s_add_u32 s16, s6, s29"); g.salu("s_addc_u32 s17, s7, 0")
    g.salu("s_add_u32 s24, s8, s29"); g.salu("s_addc_u32 s25, s9, 0")
    g.salu(f"s_mov_b32 s26, {HEADB}"); g.salu("s_mov_b32 s27, 0x20000")
    g.salu("s_lshl_b32 s48, s28, 12")
    g.valu(f"v_lshlrev_b32 v{vD}, 4, v{vLANE}",R(vLANE),R(vD))
    g.valu(f"v_add_u32 v{vK}, s48, v{vQO}",R(vQO),R(vK))
    g.salu("s_mul_i32 s41, s36, 3584")
    g.salu(f"s_add_u32 s41, s41, {VRING-2048}")
    g.salu("s_sub_u32 s41, s48, s41")
    g.valu(f"v_add_u32 v{vT+9}, s41, v{vVA}",R(vVA),R(vT+9))
    g.valu(f"v_and_b32 v{vT+10}, 0x13, v{vLANE}",R(vLANE),R(vT+10))
    g.valu(f"v_cmp_eq_u32 vcc, 0x13, v{vT+10}",R(vT+10),[])
    g.nop(1)
    g.valu(f"v_cndmask_b32 v{vT+9}, v{vT+9}, v{vVA}, vcc",R(vT+9)+R(vVA),R(vT+9))
    g.valu(f"v_cmp_gt_u32 vcc, 32, v{vLANE}",R(vLANE),[])
    g.nop(1)
    g.valu(f"v_cndmask_b32 v{vT+11}, 0, -1, vcc",[],R(vT+11))
    for k in range(16): g.valu(f"v_mov_b32 v{A+k}, 0",[],R(A+k))
    g.valu(f"v_mov_b32 v{m}, 0xff7fffff",[],R(m))
    g.salu("s_mov_b32 s30, 0")
    g.label("L_slow_loop")
    g.salu("s_mov_b32 m0, s48")
    g.nop(0)
    for k in range(2): g.raw(f"buffer_load_dwordx4 v{vD}, s[16:19], s30 offen offset:{1024*k} lds","vmem",R(vD),[],load=False)
    g.salu("s_add_u32 m0, s48, 2048")
    g.nop(0)
    for k in range(2): g.raw(f"buffer_load_dwordx4 v{vD}, s[24:27], s30 offen offset:{1024*k} lds","vmem",R(vD),[],load=False)
    g.wait(vm=0)
    for rho in range(4): g.dsread("ds_read_b64",KFr+2*rho,2,vK,8*rho)
    for i in range(4): g.dsread("ds_read_b64_tr_b16",VFr+2*i,2,vT+9,[0,224,896,1120][i])
    g.wait(lgkm=0)
    for k in range(2): g.valu(f"v_and_b32 v{KFr+k}, v{KFr+k}, v{vT+11}",R(KFr+k)+R(vT+11),R(KFr+k))
    g.nop(1)
    g.mfma(Sr,KFr,Qr,None); g.mfma(Sr,KFr+4,Qr+4,Sr)
    g.nop(11)
    t=vT+12
    g.valu(f"v_max3_f32 v{t}, v{Sr}, v{Sr+1}, v{m}",R(Sr,2)+R(m),R(t))
    for k in range(1,8): g.valu(f"v_max3_f32 v{t}, v{Sr+2*k}, v{Sr+2*k+1}, v{t}",R(Sr+2*k,2)+R(t),R(t))
    g.valu(f"v_mov_b32 v{t+1}, v{t}",R(t),R(t+1))
    g.nop(1)
    g.valu(f"v_permlane32_swap_b32 v{t}, v{t+1}",R(t,2),R(t,2))
    g.nop(1)
    g.valu(f"v_max_f32 v{t}, v{t}, v{t+1}",R(t,2),R(t))
    g.valu(f"v_sub_f32 v{t+1}, v{m}, v{t}",R(m)+R(t),R(t+1))
    g.valu(f"v_exp_f32 v{t+1}, v{t+1}",R(t+1),R(t+1),trans=True)
    g.valu(f"v_mov_b32 v{m}, v{t}",R(t),R(m))
    for k in range(16): g.valu(f"v_sub_f32 v{Sr+k}, v{Sr+k}, v{t}",R(Sr+k)+R(t),R(Sr+k))
    for k in range(16): g.exp(Sr+k)
    for k in range(16): g.valu(f"v_mul_f32 v{A+k}, v{A+k}, v{t+1}",R(A+k)+R(t+1),R(A+k))
    g.nop(1)
    g.smfmac(A,VFr,Sr,vIDX); g.smfmac(A,VFr+4,Sr+8,vIDX)
    g.nop(11)
    g.salu(f"s_add_u32 s30, s30, {TILE}")
    g.salu(f"s_cmp_lt_u32 s30, {HEADB}")
    g.salu("s_cbranch_scc1 L_slow_loop")
    g.valu(f"v_mov_b32 v{vT+2}, v{A+12}",R(A+12),R(vT+2))
    g.valu(f"v_mov_b32 v{vT+3}, v{A+12}",R(A+12),R(vT+3))
    g.nop(1)
    g.valu(f"v_permlane32_swap_b32 v{vT+2}, v{vT+3}",R(vT+2,2),R(vT+2,2))
    g.nop(1)
    g.salu("s_branch L_final")
    e=g.check()
    if e: print("slow path errs:",e,file=sys.stderr)
    return g

HDR=f"""; Fused attention, B*H=32 heads, S=2048, Dh=28 (bf16).
; @launch grid=(256,1,1) block=(512,1,1) lds={LDS}
.amdgcn_target "amdgcn-amd-amdhsa--gfx950"
.text
.globl {NAME}_kernel
.p2align 8
.type {NAME}_kernel,@function
{NAME}_kernel:
"""
FTR=f""".section .rodata,"a"
.p2align 6
.amdhsa_kernel {NAME}_kernel
  .amdhsa_next_free_vgpr {NV}
  .amdhsa_next_free_sgpr 96
  .amdhsa_accum_offset {NV}
  .amdhsa_group_segment_fixed_size 0
  .amdhsa_kernarg_size 48
  .amdhsa_user_sgpr_count 2
  .amdhsa_user_sgpr_kernarg_segment_ptr 1
  .amdhsa_system_sgpr_workgroup_id_x 1
.end_amdhsa_kernel
"""
if __name__=="__main__":
    opt={}
    out=sys.argv[1]
    for a in sys.argv[2:]:
        k,_,v=a.partition("="); opt[k]=v or 1
    g,sl,errs=build(opt)
    for e in errs: print("HAZARD:",e,file=sys.stderr)
    txt=g.text().replace("    s_mov_b32 s22, 14336\n","    s_mov_b32 s22, 14336\n    s_mov_b32 s44, 0x5f800000\n    s_mov_b64 s[46:47], 0\n")
    open(out,"w").write(HDR+txt+sl.text()+FTR)
```

```python
import sys, math, struct
from asmlib import *

NAME="standalone__fused_io_aware_attn__prompt"
HEADB=114688; BLK=7168; TILE=1792
KRING=0; NSLOT=8; VRING=NSLOT*BLK; ONES=2*NSLOT*BLK; XCH=ONES+4096; LDS=XCH+32768
def f2u(x): return struct.unpack("<I",struct.pack("<f",x))[0]
CSC=math.log2(math.e)/math.sqrt(28.0)

vLANE=2; vK=3; vD=4; vQO=5
vVA=6
vOUT=14; vIDX=15
vV=16
vQ=32
vKF=48
vS=64
vO=128
vT=160
NV=192

class G(Prog):
    def __init__(s, opt):
        super().__init__(); s.opt=opt; s.q=[]
    def ldsread(s, op, d, n, addr, off):
        s.dsread(op,d,n,addr,off); s.q.append(set(R(d,n)))
    def need(s, regs):
        regs=set(regs); last=-1
        for k,x in enumerate(s.q):
            if x&regs: last=k
        if last>=0:
            n=len(s.q)-1-last
            s.wait(lgkm=n); s.q=s.q[last+1:]
    def stamp(s, k):
        if s.opt.get("stamps") or s.opt.get("enc"):
            s.raw(f"{'s_memrealtime' if s.opt.get('rt') else 's_memtime'} s[{60+2*k}:{61+2*k}]","salu")

def S(u): return vS+16*(u&3)
def O(u): return vO+16*(u&1)
def Q(u): return vQ+8*(u&1)
def KF(j): return vKF+8*(j&1)
def VF(j): return vV+8*(j&1)

def kread(g,j,rho):
    n=j>>1; kt=j&1
    g.ldsread("ds_read_b64", KF(j)+2*rho, 2, vK, KRING+(n%NSLOT)*BLK+kt*TILE+8*rho)
def vread(g,j,i):
    n=j>>1; kt=j&1
    g.ldsread("ds_read_b64_tr_b16", VF(j)+2*i, 2, vVA+(n%NSLOT), kt*TILE+[0,224,896,1120][i])
def M1(g,u): g.mfma(S(u), KF(u>>1), Q(u), None)
def M2(g,u): g.mfma(S(u), KF(u>>1)+4, Q(u)+4, S(u))
def P1(g,u): g.smfmac(O(u), VF(u>>1), S(u), vIDX)
def P2(g,u): g.smfmac(O(u), VF(u>>1)+4, S(u)+8, vIDX)

def dma_setup(g,pg):
    g.salu(f"s_add_u32 m0, s31, {(pg%(NSLOT//2))*2*BLK}")
    g.salu(f"s_add_u32 s30, s34, {pg*2*BLK}")
def dma_piece(g,k):
    g.raw(f"buffer_load_dwordx4 v{vD}, s[16:19], s30 offen offset:{1024*k} lds","vmem",R(vD),[],load=False)

def build(opt):
    g=G(opt)
    g.salu("s_cmp_ge_u32 s2, 0x100")
    g.salu("s_cbranch_scc1 L_end")
    g.salu("s_load_dwordx8 s[4:11], s[0:1], 0x0")
    g.stamp(0)
    g.valu("v_lshrrev_b32 v1, 6, v0",["v0"],["v1"])
    g.valu(f"v_and_b32 v{vLANE}, 63, v0",["v0"],R(vLANE))
    g.valu("v_readfirstlane_b32 s28, v1",["v1"],[])
    g.salu("s_and_b32 s3, s2, 7")
    g.salu("s_lshr_b32 s29, s2, 6")
    g.salu("s_lshl_b32 s29, s29, 3")
    g.salu("s_add_u32 s3, s3, s29")
    g.salu(f"s_mul_i32 s29, s3, {HEADB}")
    g.salu("s_bfe_u32 s33, s2, 0x30003")
    g.salu("s_mul_i32 s33, s33, 14336")
    g.salu("s_add_u32 s33, s33, s29")
    g.valu(f"v_and_b32 v{vT}, 31, v{vLANE}",R(vLANE),R(vT))
    g.valu(f"v_lshrrev_b32 v{vT+1}, 5, v{vLANE}",R(vLANE),R(vT+1))
    g.valu(f"v_mul_u32_u24 v{vT}, 56, v{vT}",R(vT),R(vT))
    g.valu(f"v_mad_u32_u24 v{vQO}, v{vT+1}, 24, v{vT}",R(vT,2),R(vQO))
    g.salu("s_and_b32 s35, s28, 3")
    g.salu("s_lshr_b32 s36, s28, 2")
    g.salu("s_mul_i32 s35, s35, 3584")
    g.salu(f"s_mul_i32 s37, s36, {TILE}")
    g.salu("s_add_u32 s38, s35, s37")
    g.salu(f"s_xor_b32 s37, s37, {TILE}")
    g.salu("s_add_u32 s37, s35, s37")
    g.salu("s_and_b32 s39, s28, 1")
    g.salu("s_mul_i32 s39, s39, 3072")
    g.valu(f"v_lshl_add_u32 v{vD}, v{vLANE}, 4, s39",R(vLANE),R(vD))
    g.salu(f"s_mul_i32 s34, s36, {BLK}")
    g.salu("s_add_u32 s31, s34, s39")
    g.salu("s_mov_b32 s14, 14336")
    g.salu("s_mov_b32 s15, 0x20000")
    g.salu(f"s_mov_b32 s18, {HEADB}")
    g.salu("s_mov_b32 s19, 0x20000")
    g.salu("s_bitcmp1_b32 s28, 1")
    g.salu(f"s_cselect_b32 s40, {VRING}, {KRING}")
    g.salu("s_add_u32 s31, s31, s40")
    g.wait(lgkm=0)
    g.stamp(1)
    g.salu("s_add_u32 s12, s4, s33")
    g.salu("s_addc_u32 s13, s5, 0")
    for t,so in((0,"s37"),(1,"s38")):
        for k in range(2):
            g.raw(f"buffer_load_dwordx4 {vr(vQ+8*t+4*k,4)}, v{vQO}, s[12:15], {so} offen offset:{16*k}","vmem",R(vQO),R(vQ+8*t+4*k,4),load=True)
    g.salu("s_bitcmp1_b32 s28, 1")
    g.salu("s_cselect_b32 s16, s8, s6")
    g.salu("s_cselect_b32 s17, s9, s7")
    g.salu("s_add_u32 s16, s16, s29")
    g.salu("s_addc_u32 s17, s17, 0")
    for pg in range(2):
        dma_setup(g,pg)
        for k in range(4): dma_piece(g,k)
    g.stamp(2)
    g.salu("s_add_u32 s20, s10, s33")
    g.salu("s_addc_u32 s21, s11, 0")
    g.salu("s_mov_b32 s22, 14336")
    g.salu("s_mov_b32 s23, 0x20000")
    g.valu(f"v_mov_b32 v{vT+2}, 0x3f803f80",[],R(vT+2))
    g.valu(f"v_mov_b32 v{vT+3}, 0x3f803f80",[],R(vT+3))
    g.valu(f"v_lshlrev_b32 v{vT+4}, 3, v0",["v0"],R(vT+4))
    g.valu(f"v_add_u32 v{vT+4}, {ONES}, v{vT+4}",R(vT+4),R(vT+4))
    g.dswrite("ds_write_b64",vT+4,vT+2,2,0)
    g.salu("s_mul_i32 s41, s36, 3584")
    g.valu(f"v_add_u32 v{vK}, s41, v{vQO}",R(vQO),R(vK))
    g.valu(f"v_lshl_add_u32 v{vOUT}, v{vT+1}, 5, v{vT}",R(vT,2),R(vOUT))
    g.salu(f"s_add_u32 s41, s41, {VRING}")
    g.valu(f"v_bfe_u32 v{vT+5}, v{vLANE}, 2, 2",R(vLANE),R(vT+5))
    g.valu(f"v_lshl_add_u32 v{vT+5}, v{vT+1}, 3, v{vT+5}",R(vT+1)+R(vT+5),R(vT+5))
    g.valu(f"v_mul_u32_u24 v{vT+5}, 56, v{vT+5}",R(vT+5),R(vT+5))
    g.valu(f"v_and_b32 v{vT+6}, 16, v{vLANE}",R(vLANE),R(vT+6))
    g.valu(f"v_add3_u32 v{vT+5}, v{vT+5}, v{vT+6}, s41",R(vT+5,2),R(vT+5))
    g.valu(f"v_and_b32 v{vT+6}, 2, v{vLANE}",R(vLANE),R(vT+6))
    g.valu(f"v_lshl_add_u32 v{vT+5}, v{vT+6}, 2, v{vT+5}",R(vT+5,2),R(vT+5))
    g.valu(f"v_and_b32 v{vT+6}, 1, v{vLANE}",R(vLANE),R(vT+6))
    g.valu(f"v_lshl_add_u32 v{vT+5}, v{vT+6}, 5, v{vT+5}",R(vT+5,2),R(vT+5))
    g.valu(f"v_and_b32 v{vT+6}, 0x13, v{vLANE}",R(vLANE),R(vT+6))
    g.valu(f"v_cmp_eq_u32 vcc, 0x13, v{vT+6}",R(vT+6),[])
    g.valu(f"v_lshlrev_b32 v{vT+7}, 6, v{vT+1}",R(vT+1),R(vT+7))
    g.valu(f"v_sub_u32 v{vT+7}, {ONES+224}, v{vT+7}",R(vT+7),R(vT+7))
    g.valu(f"v_mov_b32 v{vT+8}, {BLK}",[],R(vT+8))
    g.valu(f"v_cndmask_b32 v{vVA}, v{vT+5}, v{vT+7}, vcc",R(vT+5)+R(vT+7),R(vVA))
    g.valu(f"v_cndmask_b32 v{vT+8}, v{vT+8}, 0, vcc".replace(f"v{vT+8}, 0, vcc","v%d, 0, vcc"%(vT+8)),R(vT+8),R(vT+8))
    for k in range(1,NSLOT):
        g.valu(f"v_add_u32 v{vVA+k}, v{vVA+k-1}, v{vT+8}",R(vVA+k-1)+R(vT+8),R(vVA+k))
    g.valu(f"v_mov_b32 v{vIDX}, 0xdddddddd",[],R(vIDX))
    for k in range(32): g.valu(f"v_mov_b32 v{vO+k}, 0",[],R(vO+k))
    g.valu(f"v_mov_b32 v{vT+10}, 0x{f2u(CSC):08x}",[],R(vT+10))
    g.valu(f"v_mov_b32 v{vT+11}, 0x{f2u(CSC):08x}",[],R(vT+11))
    g.valu(f"v_cmp_eq_u32 vcc, 0, v{vT+1}",R(vT+1),[])
    g.valu(f"v_mov_b32 v{vT+14}, 0xffff0000",[],R(vT+14))
    g.nop(0)
    g.valu(f"v_cndmask_b32 v{vT+12}, 0, v{vT+10}, vcc",R(vT+10),R(vT+12))
    g.valu(f"v_cndmask_b32 v{vT+13}, 0, v{vT+10}, vcc",R(vT+10),R(vT+13))
    for k in range(16):
        if k%4==0: g.wait(vm=8+3-k//4)
        r=vQ+k; t=vT+16+2*(k&3)
        cc=vT+12 if (k&7)<2 else vT+10
        g.valu(f"v_lshlrev_b32 v{t}, 16, v{r}",R(r),R(t))
        g.valu(f"v_and_b32 v{t+1}, v{vT+14}, v{r}",R(r)+R(vT+14),R(t+1))
        g.valu(f"v_pk_mul_f32 {vr(t,2)}, {vr(t,2)}, {vr(cc,2)}",R(t,2)+R(cc,2),R(t,2))
        g.valu(f"v_cvt_pk_bf16_f32 v{r}, v{t}, v{t+1}",R(t,2),R(r))
    g.stamp(3)
    g.wait(vm=4,lgkm=0)
    g.raw("s_barrier","salu")
    g.stamp(4)
    for rho in range(4): kread(g,0,rho)
    for rho in range(4): kread(g,1,rho)
    for i in range(4): vread(g,0,i)
    g.need(R(KF(0),4)); M1(g,0)
    g.need(R(KF(0)+4,4)); M2(g,0)
    g.nop(11)
    dma_at={1:2,3:3,12:4,28:5,30:6,36:7}
    sync_before={4:8,12:0,28:0,36:0,52:0}
    NU=64
    for u in range(NU):
        g.comment(f"slot {u}")
        j=u>>1
        E=[S(u)+k for k in range(16)]
        reads=[]
        if u%2==0 and j+2<32: reads=[lambda r=r: kread(g,j+2,r) for r in range(4)]
        if u%2==1 and j+1<32: reads=[lambda i=i: vread(g,j+1,i) for i in range(4)]
        dmas=[]
        if u in dma_at:
            dmas=[lambda k=k: dma_piece(g,k) for k in range(4)]
        def after(k):
            if dmas:
                if k==0: dma_setup(g,dma_at[u])
                dmas[k]()
            if reads: reads[k]()
        if u==0:
            for k in (0,1,2): g.exp(E[k])
            M1(g,1)
            for k in (3,4,5): g.exp(E[k])
            M2(g,1); after(0)
            g.need(R(KF(1),8))
            for k in (6,7,8): g.exp(E[k])
            M1(g,2); after(1)
            for k in (9,10,11): g.exp(E[k])
            M2(g,2); g.need(R(VF(0),8)); after(2)
            for k in (12,13): g.exp(E[k])
            P1(g,0); after(3)
            for k in (14,15): g.exp(E[k])
            continue
        if u+2<NU:
            M1(g,u+2); after(0)
            for k in range(0,4): g.exp(E[k])
            M2(g,u+2); after(1)
            for k in range(4,8): g.exp(E[k])
            P2(g,u-1)
            if u%2==0: g.need(R(VF(j),8))
            after(2)
            for k in range(8,12): g.exp(E[k])
            P1(g,u)
            if u%2==1 and (u+3)<NU: g.need(R(KF((u+3)>>1),8))
            after(3)
            if (u+1) in sync_before:
                g.wait(vm=sync_before[u+1]); g.raw("s_barrier","salu")
            for k in range(12,16): g.exp(E[k])
        else:
            for k in range(0,2): g.exp(E[k])
            P2(g,u-1)
            if u%2==0: g.need(R(VF(j),8))
            for k in range(2,10): g.exp(E[k])
            P1(g,u)
            for k in range(10,16): g.exp(E[k])
    g.stamp(5)
    if opt.get("extra"):
        g.salu(f"s_mov_b32 s49, {int(opt['extra'])}")
        g.label("L_extra")
        for k in range(16): g.valu(f"v_exp_f32 v{vT+16+k}, v{vT+16+k}",[],[],trans=True)
        g.salu("s_sub_u32 s49, s49, 1")
        g.salu("s_cmp_lg_u32 s49, 0")
        g.salu("s_cbranch_scc1 L_extra")
    g.salu("s_lshl_b32 s41, s28, 12")
    g.salu(f"s_add_u32 s41, s41, {XCH}")
    P2(g,NU-1)
    g.valu(f"v_lshl_add_u32 v{vT}, v{vLANE}, 4, s41",R(vLANE),R(vT))
    g.salu("s_xor_b32 s41, s28, 4")
    g.salu("s_lshl_b32 s41, s41, 12")
    g.salu(f"s_add_u32 s41, s41, {XCH}")
    g.valu(f"v_lshl_add_u32 v{vT+1}, v{vLANE}, 4, s41",R(vLANE),R(vT+1))
    for k in range(4): g.dswrite("ds_write_b128",vT,vO+4*k,4,1024*k)
    g.wait(lgkm=0)
    g.raw("s_barrier","salu")
    for k in range(4): g.ldsread("ds_read_b128",vS+4*k,4,vT+1,1024*k)
    A=vO+16
    for k in (3,0,1,2):
        pass
    g.need(R(vS,16))
    g.valu(f"v_add_f32 v{A+12}, v{A+12}, v{vS+12}",R(A+12)+R(vS+12),R(A+12))
    g.valu(f"v_add_f32 v{A+13}, v{A+13}, v{vS+13}",R(A+13)+R(vS+13),R(A+13))
    g.valu(f"v_mov_b32 v{vT+2}, v{A+12}",R(A+12),R(vT+2))
    g.valu(f"v_mov_b32 v{vT+3}, v{A+12}",R(A+12),R(vT+3))
    for k in (0,1): g.valu(f"v_add_f32 v{A+k}, v{A+k}, v{vS+k}",R(A+k)+R(vS+k),R(A+k))
    g.valu(f"v_permlane32_swap_b32 v{vT+2}, v{vT+3}",R(vT+2,2),R(vT+2,2))
    for k in list(range(2,12))+[14,15]: g.valu(f"v_add_f32 v{A+k}, v{A+k}, v{vS+k}",R(A+k)+R(vS+k),R(A+k))
    g.label("L_final")
    g.valu(f"v_rcp_f32 v{vT+4}, v{vT+3}",R(vT+3),R(vT+4),trans=True)
    g.valu(f"v_mov_b32 v{vT+5}, 0",[],R(vT+5))
    for k in range(16): g.valu(f"v_mul_f32 v{A+k}, v{A+k}, v{vT+4}",R(A+k)+R(vT+4),R(A+k))
    if not opt.get("nocheck"):
        g.valu(f"v_mov_b32 v{vT+6}, 0",[],R(vT+6))
        for k in range(16): g.valu(f"v_fmac_f32 v{vT+5}, v{A+k}, v{vT+6}",R(A+k)+R(vT+5,2),R(vT+5))
        g.valu(f"v_add_f32 v{vT+5}, v{vT+5}, v{vT+3}",R(vT+5)+R(vT+3),R(vT+5))
        g.valu(f"v_cmp_le_f32 vcc, 1.0, v{vT+5}",R(vT+5),[])
        g.valu(f"v_cmp_ge_f32 s[42:43], s44, v{vT+5}",R(vT+5),[])
    for k in range(8): g.valu(f"v_cvt_pk_bf16_f32 v{vS+k}, v{A+2*k}, v{A+2*k+1}",R(A+2*k,2),R(vS+k))
    if not opt.get("nocheck"):
        g.salu("s_and_b64 vcc, vcc, s[42:43]")
        g.salu("s_or_b64 vcc, vcc, s[46:47]")
        g.salu("s_cmp_eq_u64 vcc, -1")
        g.salu("s_cbranch_scc0 L_slow")
    g.raw(f"buffer_store_dwordx4 {vr(vS,4)}, v{vOUT}, s[20:23], s38 offen","vmem",R(vS,4)+R(vOUT),[],load=False)
    g.raw(f"buffer_store_dwordx2 {vr(vS+4,2)}, v{vOUT}, s[20:23], s38 offen offset:16","vmem",R(vS+4,2)+R(vOUT),[],load=False)
    g.salu("s_mov_b32 exec_hi, 0")
    g.raw(f"buffer_store_dwordx2 {vr(vS+6,2)}, v{vOUT}, s[20:23], s38 offen offset:24","vmem",R(vS+6,2)+R(vOUT),[],load=False)
    if opt.get("stamps"):
        g.salu("s_mov_b64 exec, -1")
        g.stamp(6)
        g.wait(vm=0)
        g.stamp(7)
        g.salu("s_load_dwordx2 s[50:51], s[0:1], 0x28")
        g.wait(lgkm=0)
        g.valu("v_mov_b32 v1, 0",[],["v1"])
        for k in range(8): g.raw(f"v_writelane_b32 v1, s{60+2*k}, {k}","valu")
        g.salu("s_getreg_b32 s52, hwreg(HW_REG_HW_ID)")
        g.raw(f"v_writelane_b32 v1, s52, 8","valu")
        g.salu("s_getreg_b32 s52, hwreg(HW_REG_XCC_ID)")
        g.raw(f"v_writelane_b32 v1, s52, 9","valu")
        g.salu("s_lshl_b32 s52, s2, 3")
        g.salu("s_add_u32 s52, s52, s28")
        g.salu("s_lshl_b32 s52, s52, 8")
        g.valu(f"v_lshl_add_u32 v0, v{vLANE}, 2, s52",R(vLANE),["v0"])
        g.raw("global_store_dword v0, v1, s[50:51]","vmem")
    if opt.get("enc"):
        a,b,mul=[int(x) for x in opt["enc"].split(",")]
        g.salu("s_mov_b64 exec, -1")
        g.stamp(6)
        g.wait(vm=0)
        g.stamp(7)
        g.wait(lgkm=0)
        g.salu(f"s_sub_u32 s52, s{60+2*b}, s{60+2*a}")
        g.salu(f"s_mul_i32 s52, s52, {mul}")
        g.label("L_spin")
        g.salu(("s_memrealtime" if opt.get("rt") else "s_memtime")+" s[54:55]")
        g.wait(lgkm=0)
        g.salu("s_sub_u32 s53, s54, s74")
        g.salu("s_cmp_lt_u32 s53, s52")
        g.salu("s_cbranch_scc1 L_spin")
    g.label("L_end")
    g.raw("s_endpgm","salu")
    errs=g.check()
    sl=slow_path(opt)
    return g, sl, errs

def slow_path(opt):
    g=G({})
    A=vO+16; Qr=vQ+8; KFr=vKF; VFr=vV; Sr=vS; m=vT+8;
    g.label("L_slow")
    g.salu("s_mov_b64 s[46:47], -1")
    g.salu("s_add_u32 s16, s6, s29"); g.salu("s_addc_u32 s17, s7, 0")
    g.salu("s_add_u32 s24, s8, s29"); g.salu("s_addc_u32 s25, s9, 0")
    g.salu(f"s_mov_b32 s26, {HEADB}"); g.salu("s_mov_b32 s27, 0x20000")
    g.salu("s_lshl_b32 s48, s28, 12")
    g.valu(f"v_lshlrev_b32 v{vD}, 4, v{vLANE}",R(vLANE),R(vD))
    g.valu(f"v_add_u32 v{vK}, s48, v{vQO}",R(vQO),R(vK))
    g.salu("s_mul_i32 s41, s36, 3584")
    g.salu(f"s_add_u32 s41, s41, {VRING-2048}")
    g.salu("s_sub_u32 s41, s48, s41")
    g.valu(f"v_add_u32 v{vT+9}, s41, v{vVA}",R(vVA),R(vT+9))
    g.valu(f"v_and_b32 v{vT+10}, 0x13, v{vLANE}",R(vLANE),R(vT+10))
    g.valu(f"v_cmp_eq_u32 vcc, 0x13, v{vT+10}",R(vT+10),[])
    g.nop(1)
    g.valu(f"v_cndmask_b32 v{vT+9}, v{vT+9}, v{vVA}, vcc",R(vT+9)+R(vVA),R(vT+9))
    g.valu(f"v_cmp_gt_u32 vcc, 32, v{vLANE}",R(vLANE),[])
    g.nop(1)
    g.valu(f"v_cndmask_b32 v{vT+11}, 0, -1, vcc",[],R(vT+11))
    for k in range(16): g.valu(f"v_mov_b32 v{A+k}, 0",[],R(A+k))
    g.valu(f"v_mov_b32 v{m}, 0xff7fffff",[],R(m))
    g.salu("s_mov_b32 s30, 0")
    g.label("L_slow_loop")
    g.salu("s_mov_b32 m0, s48")
    g.nop(0)
    for k in range(2): g.raw(f"buffer_load_dwordx4 v{vD}, s[16:19], s30 offen offset:{1024*k} lds","vmem",R(vD),[],load=False)
    g.salu("s_add_u32 m0, s48, 2048")
    g.nop(0)
    for k in range(2): g.raw(f"buffer_load_dwordx4 v{vD}, s[24:27], s30 offen offset:{1024*k} lds","vmem",R(vD),[],load=False)
    g.wait(vm=0)
    for rho in range(4): g.dsread("ds_read_b64",KFr+2*rho,2,vK,8*rho)
    for i in range(4): g.dsread("ds_read_b64_tr_b16",VFr+2*i,2,vT+9,[0,224,896,1120][i])
    g.wait(lgkm=0)
    for k in range(2): g.valu(f"v_and_b32 v{KFr+k}, v{KFr+k}, v{vT+11}",R(KFr+k)+R(vT+11),R(KFr+k))
    g.nop(1)
    g.mfma(Sr,KFr,Qr,None); g.mfma(Sr,KFr+4,Qr+4,Sr)
    g.nop(11)
    t=vT+12
    g.valu(f"v_max3_f32 v{t}, v{Sr}, v{Sr+1}, v{m}",R(Sr,2)+R(m),R(t))
    for k in range(1,8): g.valu(f"v_max3_f32 v{t}, v{Sr+2*k}, v{Sr+2*k+1}, v{t}",R(Sr+2*k,2)+R(t),R(t))
    g.valu(f"v_mov_b32 v{t+1}, v{t}",R(t),R(t+1))
    g.nop(1)
    g.valu(f"v_permlane32_swap_b32 v{t}, v{t+1}",R(t,2),R(t,2))
    g.nop(1)
    g.valu(f"v_max_f32 v{t}, v{t}, v{t+1}",R(t,2),R(t))
    g.valu(f"v_sub_f32 v{t+1}, v{m}, v{t}",R(m)+R(t),R(t+1))
    g.valu(f"v_exp_f32 v{t+1}, v{t+1}",R(t+1),R(t+1),trans=True)
    g.valu(f"v_mov_b32 v{m}, v{t}",R(t),R(m))
    for k in range(16): g.valu(f"v_sub_f32 v{Sr+k}, v{Sr+k}, v{t}",R(Sr+k)+R(t),R(Sr+k))
    for k in range(16): g.exp(Sr+k)
    for k in range(16): g.valu(f"v_mul_f32 v{A+k}, v{A+k}, v{t+1}",R(A+k)+R(t+1),R(A+k))
    g.nop(1)
    g.smfmac(A,VFr,Sr,vIDX); g.smfmac(A,VFr+4,Sr+8,vIDX)
    g.nop(11)
    g.salu(f"s_add_u32 s30, s30, {TILE}")
    g.salu(f"s_cmp_lt_u32 s30, {HEADB}")
    g.salu("s_cbranch_scc1 L_slow_loop")
    g.valu(f"v_mov_b32 v{vT+2}, v{A+12}",R(A+12),R(vT+2))
    g.valu(f"v_mov_b32 v{vT+3}, v{A+12}",R(A+12),R(vT+3))
    g.nop(1)
    g.valu(f"v_permlane32_swap_b32 v{vT+2}, v{vT+3}",R(vT+2,2),R(vT+2,2))
    g.nop(1)
    g.salu("s_branch L_final")
    e=g.check()
    if e: print("slow path errs:",e,file=sys.stderr)
    return g

HDR=f"""; Fused attention, B*H=32 heads, S=2048, Dh=28 (bf16).
; @launch grid=(256,1,1) block=(512,1,1) lds={LDS}
.amdgcn_target "amdgcn-amd-amdhsa--gfx950"
.text
.globl {NAME}_kernel
.p2align 8
.type {NAME}_kernel,@function
{NAME}_kernel:
"""
FTR=f""".section .rodata,"a"
.p2align 6
.amdhsa_kernel {NAME}_kernel
  .amdhsa_next_free_vgpr {NV}
  .amdhsa_next_free_sgpr 96
  .amdhsa_accum_offset {NV}
  .amdhsa_group_segment_fixed_size 0
  .amdhsa_kernarg_size 48
  .amdhsa_user_sgpr_count 2
  .amdhsa_user_sgpr_kernarg_segment_ptr 1
  .amdhsa_system_sgpr_workgroup_id_x 1
.end_amdhsa_kernel
"""
if __name__=="__main__":
    opt={}
    out=sys.argv[1]
    for a in sys.argv[2:]:
        k,_,v=a.partition("="); opt[k]=v or 1
    g,sl,errs=build(opt)
    for e in errs: print("HAZARD:",e,file=sys.stderr)
    txt=g.text().replace("    s_mov_b32 s22, 14336\n","    s_mov_b32 s22, 14336\n    s_mov_b32 s44, 0x5f800000\n    s_mov_b64 s[46:47], 0\n")
    open(out,"w").write(HDR+txt+sl.text()+FTR)
```

```python
import sys, math, struct
from asmlib import *

NAME="standalone__fused_io_aware_attn__prompt"
HEADB=114688; BLK=7168; TILE=1792
KRING=0; NSLOT=8; VRING=NSLOT*BLK; ONES=2*NSLOT*BLK; XCH=ONES+4096; LDS=XCH+32768
def f2u(x): return struct.unpack("<I",struct.pack("<f",x))[0]
CSC=math.log2(math.e)/math.sqrt(28.0)

vLANE=2; vK=3; vD=4; vQO=5
vVA=6
vOUT=14; vIDX=15
vV=16; vQ=32; vKF=48; vS=64; vO=128
vX=160
vT=176
vXW=1
vXR=0
NV=192

class G(Prog):
    def __init__(s, opt):
        super().__init__(); s.opt=opt; s.q=[]
    def ldsread(s, op, d, n, addr, off):
        s.dsread(op,d,n,addr,off); s.q.append(set(R(d,n)))
    def ldswrite(s, op, addr, d, n, off):
        s.dswrite(op,addr,d,n,off); s.q.append(set(["W"]))
    def need(s, regs):
        regs=set(regs); last=-1
        for k,x in enumerate(s.q):
            if x&regs: last=k
        if last>=0:
            n=len(s.q)-1-last
            s.wait(lgkm=n); s.q=s.q[last+1:]
    def stamp(s, k):
        if s.opt.get("stamps") or s.opt.get("enc"):
            s.raw(f"{'s_memrealtime' if s.opt.get('rt') else 's_memtime'} s[{60+2*k}:{61+2*k}]","salu")
    def barrier(s): s.raw("s_barrier","salu")
    def prio(s, p):
        s.nlab=getattr(s,"nlab",0)+1
        s.salu("s_cmp_eq_u32 s36, 0")
        s.salu(f"s_cbranch_scc1 L_p{s.nlab}")
        s.salu(f"s_setprio {p}")
        s.label(f"L_p{s.nlab}")

def sequence(opt):
    seq=[(u>>1,u&1) for u in range(64)]
    if not opt.get("notail"):
        seq[60:64]=[(30,0),(31,0),(30,1),(31,1)]
    return seq
def S(u): return vS+16*(u&3)
def KF(j): return vKF+8*(j&1)
def VF(j): return vV+8*(j&1)

def kread(g,j,rho):
    n=j>>1; kt=j&1
    g.ldsread("ds_read_b64", KF(j)+2*rho, 2, vK, KRING+(n%NSLOT)*BLK+kt*TILE+8*rho)
def vread(g,j,i):
    n=j>>1; kt=j&1
    g.ldsread("ds_read_b64_tr_b16", VF(j)+2*i, 2, vVA+(n%NSLOT), kt*TILE+[0,224,896,1120][i])
def dma(g,b,k):
    if k==0:
        g.salu(f"s_add_u32 m0, s31, {(b%NSLOT)*BLK}")
        g.salu(f"s_add_u32 s30, s34, {b*BLK}")
    fl=g.opt.get("dflag","").replace("+"," ") if b<int(g.opt.get("dfn",16)) else ""
    g.raw(f"buffer_load_dwordx4 v{vD}, s[16:19], s30 offen offset:{1024*k} {fl} lds","vmem",R(vD),[],load=False)

def build(opt):
    g=G(opt); seq=sequence(opt)
    def M1(u): j,t=seq[u]; g.need(R(KF(j),4)+R(vQ+8*t,4)); g.mfma(S(u), KF(j), vQ+8*t, None)
    def M2(u): j,t=seq[u]; g.need(R(KF(j)+4,4)+R(vQ+8*t+4,4)); g.mfma(S(u), KF(j)+4, vQ+8*t+4, S(u))
    def P1(u): j,t=seq[u]; g.need(R(VF(j),4)); g.smfmac(vO+16*t, VF(j), S(u), vIDX)
    def P2(u): j,t=seq[u]; g.need(R(VF(j)+4,4)); g.smfmac(vO+16*t, VF(j)+4, S(u)+8, vIDX)
    T=vT
    g.salu("s_cmp_ge_u32 s2, 0x100")
    g.salu("s_cbranch_scc1 L_end")
    g.salu("s_load_dwordx8 s[4:11], s[0:1], 0x0")
    if opt.get("pp"): g.salu("s_setprio 3")
    g.stamp(0)
    g.valu("v_lshrrev_b32 v1, 6, v0",["v0"],["v1"])
    g.valu(f"v_and_b32 v{vLANE}, 63, v0",["v0"],R(vLANE))
    g.valu("v_readfirstlane_b32 s28, v1",["v1"],[])
    g.salu("s_and_b32 s3, s2, 7")
    g.salu("s_lshr_b32 s29, s2, 6")
    g.salu("s_lshl_b32 s29, s29, 3")
    g.salu("s_add_u32 s3, s3, s29")
    g.salu(f"s_mul_i32 s29, s3, {HEADB}")
    g.salu("s_bfe_u32 s33, s2, 0x30003")
    g.salu("s_mul_i32 s33, s33, 14336")
    g.salu("s_add_u32 s33, s33, s29")
    g.valu(f"v_and_b32 v{T}, 31, v{vLANE}",R(vLANE),R(T))
    g.valu(f"v_lshrrev_b32 v{T+1}, 5, v{vLANE}",R(vLANE),R(T+1))
    g.valu(f"v_mul_u32_u24 v{T}, 56, v{T}",R(T),R(T))
    g.valu(f"v_mad_u32_u24 v{vQO}, v{T+1}, 24, v{T}",R(T,2),R(vQO))
    g.valu(f"v_lshlrev_b32 v{vD}, 4, v{vLANE}",R(vLANE),R(vD))
    g.salu("s_and_b32 s35, s28, 3")
    g.salu("s_lshr_b32 s36, s28, 2")
    g.salu("s_mul_i32 s35, s35, 3584")
    g.salu(f"s_mul_i32 s37, s36, {TILE}")
    g.salu("s_add_u32 s38, s35, s37")
    g.salu("s_and_b32 s39, s28, 1")
    g.salu("s_lshl_b32 s34, s36, 1")
    g.salu("s_add_u32 s34, s34, s39")
    g.salu("s_lshl_b32 s34, s34, 11")
    g.salu("s_min_u32 s34, s34, 5120")
    g.salu("s_mov_b32 s14, 14336")
    g.salu("s_mov_b32 s15, 0x20000")
    g.salu(f"s_mov_b32 s18, {HEADB}")
    g.salu("s_mov_b32 s19, 0x20000")
    g.salu("s_bitcmp1_b32 s28, 1")
    g.salu(f"s_cselect_b32 s31, {VRING}, {KRING}")
    g.salu("s_add_u32 s31, s31, s34")
    g.wait(lgkm=0)
    g.stamp(1)
    g.salu("s_add_u32 s12, s4, s33")
    g.salu("s_addc_u32 s13, s5, 0")
    for k in range(2):
        g.raw(f"buffer_load_dwordx4 {vr(vQ+8+4*k,4)}, v{vQO}, s[12:15], {'s35' if opt.get('halfq') else 's38'} offen offset:{16*k} {opt.get('qflag','')}","vmem",R(vQO),R(vQ+8+4*k,4),load=True)
    if opt.get("pp"): g.salu("s_setprio 2")
    g.salu("s_bitcmp1_b32 s28, 1")
    g.salu("s_cselect_b32 s16, s8, s6")
    g.salu("s_cselect_b32 s17, s9, s7")
    g.salu("s_add_u32 s16, s16, s29")
    g.salu("s_addc_u32 s17, s17, 0")
    for b in range(2):
        for k in range(2): dma(g,b,k)
        if opt.get("pp"): g.salu(f"s_setprio {1-b}")
    g.stamp(2)
    g.salu("s_add_u32 s20, s10, s33")
    g.salu("s_addc_u32 s21, s11, 0")
    g.salu("s_mov_b32 s22, 14336")
    g.salu("s_mov_b32 s23, 0x20000")
    g.salu("s_mov_b32 s44, 0x5f800000")
    g.salu("s_mov_b64 s[46:47], 0")
    g.valu(f"v_mov_b32 v{T+2}, 0x3f80",[],R(T+2))
    g.valu(f"v_mov_b32 v{T+3}, 0",[],R(T+3))
    g.valu(f"v_lshlrev_b32 v{T+4}, 3, v0",["v0"],R(T+4))
    g.valu(f"v_add_u32 v{T+4}, {ONES}, v{T+4}",R(T+4),R(T+4))
    g.ldswrite("ds_write_b64",T+4,T+2,2,0)
    g.salu("s_mul_i32 s41, s36, 3584")
    g.valu(f"v_add_u32 v{vK}, s41, v{vQO}",R(vQO),R(vK))
    g.valu(f"v_lshl_add_u32 v{vOUT}, v{T+1}, 5, v{T}",R(T,2),R(vOUT))
    g.salu("s_lshl_b32 s42, s28, 12")
    g.salu(f"s_add_u32 s42, s42, {XCH}")
    g.valu(f"v_add_u32 v{vXW}, s42, v{vD}",R(vD),R(vXW))
    g.salu("s_xor_b32 s42, s28, 4")
    g.salu("s_lshl_b32 s42, s42, 12")
    g.salu(f"s_add_u32 s42, s42, {XCH}")
    g.valu(f"v_add_u32 v{vXR}, s42, v{vD}",R(vD),R(vXR))
    g.salu(f"s_add_u32 s41, s41, {VRING}")
    g.valu(f"v_bfe_u32 v{T+5}, v{vLANE}, 2, 2",R(vLANE),R(T+5))
    g.valu(f"v_lshl_add_u32 v{T+5}, v{T+1}, 3, v{T+5}",R(T+1)+R(T+5),R(T+5))
    g.valu(f"v_mul_u32_u24 v{T+5}, 56, v{T+5}",R(T+5),R(T+5))
    g.valu(f"v_and_b32 v{T+6}, 16, v{vLANE}",R(vLANE),R(T+6))
    g.valu(f"v_add3_u32 v{T+5}, v{T+5}, v{T+6}, s41",R(T+5,2),R(T+5))
    g.valu(f"v_and_b32 v{T+6}, 2, v{vLANE}",R(vLANE),R(T+6))
    g.valu(f"v_lshl_add_u32 v{T+5}, v{T+6}, 2, v{T+5}",R(T+5,2),R(T+5))
    g.valu(f"v_and_b32 v{T+6}, 1, v{vLANE}",R(vLANE),R(T+6))
    g.valu(f"v_lshl_add_u32 v{T+5}, v{T+6}, 5, v{T+5}",R(T+5,2),R(T+5))
    g.valu(f"v_and_b32 v{T+6}, 0x13, v{vLANE}",R(vLANE),R(T+6))
    g.valu(f"v_cmp_eq_u32 vcc, 0x13, v{T+6}",R(T+6),[])
    g.valu(f"v_lshlrev_b32 v{T+7}, 6, v{T+1}",R(T+1),R(T+7))
    g.valu(f"v_sub_u32 v{T+7}, {ONES+224}, v{T+7}",R(T+7),R(T+7))
    g.valu(f"v_mov_b32 v{T+8}, {BLK}",[],R(T+8))
    g.valu(f"v_cndmask_b32 v{vVA}, v{T+5}, v{T+7}, vcc",R(T+5)+R(T+7),R(vVA))
    g.valu(f"v_cndmask_b32 v{T+8}, v{T+8}, 0, vcc",R(T+8),R(T+8))
    for k in range(1,NSLOT):
        g.valu(f"v_add_u32 v{vVA+k}, v{vVA+k-1}, v{T+8}",R(vVA+k-1)+R(T+8),R(vVA+k))
    g.valu(f"v_mov_b32 v{vIDX}, 0xdddddddd",[],R(vIDX))
    for k in range(32): g.valu(f"v_mov_b32 v{vO+k}, 0",[],R(vO+k))
    g.valu(f"v_mov_b32 v{T+10}, 0x{f2u(CSC):08x}",[],R(T+10))
    g.valu(f"v_mov_b32 v{T+11}, 0x{f2u(CSC):08x}",[],R(T+11))
    g.valu(f"v_cmp_eq_u32 vcc, 0, v{T+1}",R(T+1),[])
    g.valu(f"v_mov_b32 v{T+14}, 0xffff0000",[],R(T+14))
    g.nop(0)
    g.valu(f"v_cndmask_b32 v{T+12}, 0, v{T+10}, vcc",R(T+10),R(T+12))
    g.valu(f"v_cndmask_b32 v{T+13}, 0, v{T+10}, vcc",R(T+10),R(T+13))
    for k in range(8):
        if k%4==0: g.wait(vm=5-k//4)
        r=vQ+8+k; t=vX+2*k
        cc=T+12 if k<2 else T+10
        g.valu(f"v_lshlrev_b32 v{t}, 16, v{r}",R(r),R(t))
        g.valu(f"v_and_b32 v{t+1}, v{T+14}, v{r}",R(r)+R(T+14),R(t+1))
        g.valu(f"v_pk_mul_f32 {vr(t,2)}, {vr(t,2)}, {vr(cc,2)}",R(t,2)+R(cc,2),R(t,2))
        g.valu(f"v_cvt_pk_bf16_f32 v{r}, v{t}, v{t+1}",R(t,2),R(r))
        if k%4==3: g.ldswrite("ds_write_b128",vXW,vQ+8+(k&4),4,1024*(k>>2))
    g.stamp(3)
    early=not opt.get("b01")
    pre_n=int(opt.get("pre",0))
    for b in range(2,2+pre_n):
        for k in range(2): dma(g,b,k)
    g.wait(vm=(2 if early else 0)+2*pre_n,lgkm=0); g.q=[]
    g.barrier()
    g.stamp(4)
    for rho in range(4): kread(g,0,rho)
    for k in range(2): g.ldsread("ds_read_b128",vQ+4*k,4,vXR,1024*k)
    for rho in range(4): kread(g,1,rho)
    for i in range(4): vread(g,0,i)
    seq[0],seq[1]=seq[1],seq[0]
    M1(0); M2(0)
    g.nop(11)
    dma_at={12:8,14:9,16:10,28:11,29:12,30:13,31:14,40:15}
    first_slots=[int(x) for x in opt.get("fs","0,1,2,3,5,6").split(",")]
    for n,b in enumerate(range(2+pre_n,8)): dma_at[first_slots[n]]=b
    issued_by=lambda u: 2+pre_n+len([x for x in first_slots[:6-pre_n] if x<=u])
    vm_early=2*(issued_by(0)-2)
    sync_before={4:2*(issued_by(3)-4),12:0,28:0,40:0,56:0}
    segs=[0,4,12,28,40,56,64]
    phi=float(opt.get("phi",0))
    prio_hi=set(); prio_lo=set()
    if phi>0:
        for a,b in zip(segs[:-1],segs[1:]):
            prio_hi.add(a); prio_lo.add(a+int(round((b-a)*phi)))
    NU=64
    lv={}
    if opt.get("lv"):
        fr=[float(x) for x in opt["lv"].split(",")]
        bars=[0]+([3] if early else [])+[4*(x-1)+3 for x in sorted(sync_before)]+[4*63]
        for a,b in zip(bars[:-1],bars[1:]):
            lv[a]=3
            for n,f in enumerate(fr):
                p=a+int(round((b-a)*f))
                if a<p<b: lv[p]=2-n
        lv[4*63]=int(opt.get("lvend",0))
    plan={u:[] for u in range(NU)}
    for j in range(2,32):
        u=2*(j-2)
        if j==2 and early: u=1
        plan[u]+= [lambda j=j,r=r: kread(g,j,r) for r in range(4)]
    for j in range(1,32):
        u=2*(j-1)+1
        if j==31 and not opt.get("notail"): u=60
        plan[u]+= [lambda j=j,i=i: vread(g,j,i) for i in range(4)]
    for u in range(NU):
        g.comment(f"slot {u} tile {seq[u]}")
        if opt.get("prof") and u%8==0:
            k=u//8
            g.salu(f"s_memtime s[{60+4*k}:{61+4*k}]"); g.salu(f"s_memrealtime s[{62+4*k}:{63+4*k}]")
        if opt.get("fine") and u%4==0:
            g.salu(f"s_memtime s[{60+2*(u//4)}:{61+2*(u//4)}]")
        E=[S(u)+k for k in range(16)]
        reads=plan[u]; per=(len(reads)+3)//4
        if u==58 and not opt.get('notail'): per=2
        def setlv(k):
            if 4*u+k in lv: g.salu(f"s_setprio {lv[4*u+k]}")
        def after(k,dolv=True):
            if dolv: setlv(k)
            if k==0 and u in prio_lo and u not in prio_hi: g.prio(0)
            if k==0 and u in prio_hi: g.prio(1)
            if u in dma_at and k in(0,2): dma(g,dma_at[u],k//2)
            for f in reads[k*per:(k+1)*per]: f()
        def pre(u2,which):
            if u2>=NU: return
            j,t=seq[u2]
            if which=="K": g.need(R(KF(j),8)+R(vQ+8*t,8))
            else: g.need(R(VF(j),8))
        if u==0:
            for k in (0,1,2): g.exp(E[k])
            M1(1); after(0)
            for k in (3,4,5): g.exp(E[k])
            M2(1); pre(2,"K"); after(1)
            for k in (6,7,8): g.exp(E[k])
            M1(2); after(2)
            for k in (9,10,11): g.exp(E[k])
            M2(2); pre(0,"V"); after(3,not early)
            for k in (12,13): g.exp(E[k])
            P1(0)
            if early: g.wait(vm=vm_early); g.barrier(); setlv(3)
            for k in (14,15): g.exp(E[k])
            continue
        if u+2<NU:
            M1(u+2); after(0)
            for k in range(0,4): g.exp(E[k])
            M2(u+2); after(1)
            for k in range(4,8): g.exp(E[k])
            P2(u-1); pre(u,"V"); after(2)
            for k in range(8,12): g.exp(E[k])
            P1(u); pre(u+3,"K"); after(3,(u+1) not in sync_before)
            if (u+1) in sync_before:
                g.wait(vm=sync_before[u+1]); g.barrier(); setlv(3)
            for k in range(12,16): g.exp(E[k])
        elif opt.get("notail"):
            for k in range(0,2): g.exp(E[k])
            P2(u-1); after(0)
            for k in range(2,10): g.exp(E[k])
            P1(u)
            for k in range(10,16): g.exp(E[k])
        elif u==62:
            g.exp(E[0]); g.exp(E[1])
            P2(61); after(0)
            for k in range(2,6): g.exp(E[k])
            setlv(1)
            for k in range(6,10): g.exp(E[k])
            P1(62); setlv(2); setlv(3)
            for k in range(10,13): g.exp(E[k])
            for k in range(4):
                g.ldswrite("ds_write_b128",vXW,vO+4*k,4,1024*k)
                if k<3: g.exp(E[13+k])
        elif u==63:
            g.exp(E[0]); g.exp(E[1])
            P2(62)
            g.wait(lgkm=0); g.q=[]
            g.barrier(); setlv(0)
            for k in range(4): g.ldsread("ds_read_b128",vX+4*k,4,vXR,1024*k)
            for k in range(2,10): g.exp(E[k])
            P1(63)
            for k in range(10,16): g.exp(E[k])
    g.stamp(5)
    if opt.get("prof"):
        g.salu(f"s_memtime s[92:93]"); g.salu(f"s_memrealtime s[94:95]")
    if opt.get("fine"): g.salu(f"s_memtime s[92:93]")
    g.nop(1)
    P2(NU-1)
    A=vO+16
    if opt.get("notail"):
        for k in range(4): g.ldswrite("ds_write_b128",vXW,vO+4*k,4,1024*k)
        g.wait(lgkm=0); g.q=[]
        g.barrier()
        for k in range(4): g.ldsread("ds_read_b128",vX+4*k,4,vXR,1024*k)
        g.need(R(vX,16))
    else:
        g.need(R(vX,16))
        g.nop(10)
    def pk(op,d,a,b): g.valu(f"{op} {vr(d,2)}, {vr(a,2)}, {vr(b,2)}",R(a,2)+R(b,2),R(d,2))
    pk("v_pk_add_f32",A+12,A+12,vX+12)
    pk("v_pk_add_f32",A+0,A+0,vX+0)
    g.valu(f"v_mov_b32 v{T+2}, v{A+12}",R(A+12),R(T+2))
    g.valu(f"v_mov_b32 v{T+3}, v{A+12}",R(A+12),R(T+3))
    pk("v_pk_add_f32",A+2,A+2,vX+2)
    pk("v_pk_add_f32",A+4,A+4,vX+4)
    g.valu(f"v_permlane32_swap_b32 v{T+2}, v{T+3}",R(T+2,2),R(T+2,2))
    for k in (6,8,10,14): pk("v_pk_add_f32",A+k,A+k,vX+k)
    g.label("L_final")
    g.valu(f"v_rcp_f32 v{T+4}, v{T+3}",R(T+3),R(T+4),trans=True)
    pk("v_pk_add_f32",T+6,A,A+2)
    g.valu(f"v_mov_b32 v{T+5}, v{T+4}",R(T+4),R(T+5))
    for k in range(4,16,2): pk("v_pk_add_f32",T+6,T+6,A+k)
    for k in range(0,16,2): pk("v_pk_mul_f32",A+k,A+k,T+4)
    g.valu(f"v_add_f32 v{T+6}, v{T+6}, v{T+7}",R(T+6,2),R(T+6))
    g.valu(f"v_fma_f32 v{T+6}, v{T+6}, 0, v{T+3}",R(T+6)+R(T+3),R(T+6))
    g.valu(f"v_cmp_le_f32 vcc, 1.0, v{T+6}",R(T+6),[])
    g.valu(f"v_cmp_ge_f32 s[42:43], s44, v{T+6}",R(T+6),[])
    for k in range(8): g.valu(f"v_cvt_pk_bf16_f32 v{vS+k}, v{A+2*k}, v{A+2*k+1}",R(A+2*k,2),R(vS+k))
    g.salu("s_and_b64 vcc, vcc, s[42:43]")
    g.salu("s_or_b64 vcc, vcc, s[46:47]")
    g.salu("s_cmp_eq_u64 vcc, -1")
    g.salu("s_cbranch_scc0 L_slow")
    sfx=opt.get("stflag","").replace("+"," ")
    if opt.get("cst"):
        g.salu("s_lshl_b32 s48, s28, 11")
        g.valu(f"v_add_u32 v{T+8}, s48, v{vOUT}",R(vOUT),R(T+8))
        g.valu(f"v_add_u32 v{T+9}, s48, v{vD}",R(vD),R(T+9))
        for k in range(3): g.dswrite("ds_write_b64",T+8,vS+2*k,2,8*k)
        g.salu("s_mov_b32 exec_hi, 0")
        g.dswrite("ds_write_b64",T+8,vS+6,2,24)
        g.salu("s_mov_b32 exec_hi, -1")
        g.wait(lgkm=0)
        g.dsread("ds_read_b128",vS+8,4,T+9,0)
        g.dsread("ds_read_b128",vS+12,4,T+9,1024)
        g.wait(lgkm=1)
        g.raw(f"buffer_store_dwordx4 {vr(vS+8,4)}, v{vD}, s[20:23], s38 offen {sfx}","vmem",R(vS+8,4)+R(vD),[],load=False)
        g.salu("s_mov_b32 exec_hi, 0xffff")
        g.wait(lgkm=0)
        g.raw(f"buffer_store_dwordx4 {vr(vS+12,4)}, v{vD}, s[20:23], s38 offen offset:1024 {sfx}","vmem",R(vS+12,4)+R(vD),[],load=False)
    else:
        g.raw(f"buffer_store_dwordx4 {vr(vS,4)}, v{vOUT}, s[20:23], s38 offen {sfx}","vmem",R(vS,4)+R(vOUT),[],load=False)
        g.raw(f"buffer_store_dwordx2 {vr(vS+4,2)}, v{vOUT}, s[20:23], s38 offen offset:16 {sfx}","vmem",R(vS+4,2)+R(vOUT),[],load=False)
        g.salu("s_mov_b32 exec_hi, 0")
        g.raw(f"buffer_store_dwordx2 {vr(vS+6,2)}, v{vOUT}, s[20:23], s38 offen offset:24 {sfx}","vmem",R(vS+6,2)+R(vOUT),[],load=False)
    if opt.get("prof") or opt.get("stamps") or opt.get("fine"):
        g.salu("s_mov_b64 exec, -1")
        g.stamp(6); g.wait(vm=0); g.stamp(7)
        g.salu("s_load_dwordx2 s[50:51], s[0:1], 0x28")
        g.wait(lgkm=0)
        g.valu("v_mov_b32 v1, 0",[],["v1"])
        if opt.get("fine"):
            for k in range(17): g.raw(f"v_writelane_b32 v1, s{60+2*k}, {k}","valu")
        elif opt.get("prof"):
            for k in range(9): g.raw(f"v_writelane_b32 v1, s{60+4*k}, {k}","valu"); g.raw(f"v_writelane_b32 v1, s{62+4*k}, {16+k}","valu")
        else:
            for k in range(8): g.raw(f"v_writelane_b32 v1, s{60+2*k}, {k}","valu")
            g.salu("s_getreg_b32 s52, hwreg(HW_REG_HW_ID)")
            g.raw(f"v_writelane_b32 v1, s52, 8","valu")
            g.salu("s_getreg_b32 s52, hwreg(HW_REG_XCC_ID)")
            g.raw(f"v_writelane_b32 v1, s52, 9","valu")
        g.salu("s_lshl_b32 s52, s2, 3")
        g.salu("s_add_u32 s52, s52, s28")
        g.salu("s_lshl_b32 s52, s52, 8")
        g.valu(f"v_lshl_add_u32 v0, v{vLANE}, 2, s52",R(vLANE),["v0"])
        g.raw("global_store_dword v0, v1, s[50:51]","vmem")
    if opt.get("enc"):
        a,b,mul=[int(x) for x in opt["enc"].split(",")]
        g.salu("s_mov_b64 exec, -1")
        g.stamp(6); g.wait(vm=0); g.stamp(7)
        g.wait(lgkm=0)
        g.salu(f"s_sub_u32 s52, s{60+2*b}, s{60+2*a}")
        g.salu(f"s_mul_i32 s52, s52, {mul}")
        g.label("L_spin")
        g.salu(("s_memrealtime" if opt.get("rt") else "s_memtime")+" s[54:55]")
        g.wait(lgkm=0)
        g.salu("s_sub_u32 s53, s54, s74")
        g.salu("s_cmp_lt_u32 s53, s52")
        g.salu("s_cbranch_scc1 L_spin")
    g.label("L_end")
    g.raw("s_endpgm","salu")
    errs=g.check()
    return g, slow_path(opt), errs

def slow_path(opt):
    g=G({}); T=vT
    A=vO+16; Qr=vQ+8; KFr=vKF; VFr=vV; Sr=vS; m=T+8
    g.label("L_slow")
    g.salu("s_mov_b64 s[46:47], -1")
    g.salu("s_add_u32 s16, s6, s29"); g.salu("s_addc_u32 s17, s7, 0")
    g.salu("s_add_u32 s24, s8, s29"); g.salu("s_addc_u32 s25, s9, 0")
    g.salu(f"s_mov_b32 s26, {HEADB}"); g.salu("s_mov_b32 s27, 0x20000")
    g.salu("s_lshl_b32 s48, s28, 12")
    g.valu(f"v_add_u32 v{vK}, s48, v{vQO}",R(vQO),R(vK))
    g.salu("s_mul_i32 s41, s36, 3584")
    g.salu(f"s_add_u32 s41, s41, {VRING-2048}")
    g.salu("s_sub_u32 s41, s48, s41")
    g.valu(f"v_add_u32 v{T+9}, s41, v{vVA}",R(vVA),R(T+9))
    g.valu(f"v_and_b32 v{T+10}, 0x13, v{vLANE}",R(vLANE),R(T+10))
    g.valu(f"v_cmp_eq_u32 vcc, 0x13, v{T+10}",R(T+10),[])
    g.nop(1)
    g.valu(f"v_cndmask_b32 v{T+9}, v{T+9}, v{vVA}, vcc",R(T+9)+R(vVA),R(T+9))
    g.valu(f"v_cmp_gt_u32 vcc, 32, v{vLANE}",R(vLANE),[])
    g.nop(1)
    g.valu(f"v_cndmask_b32 v{T+11}, 0, -1, vcc",[],R(T+11))
    for k in range(16): g.valu(f"v_mov_b32 v{A+k}, 0",[],R(A+k))
    g.valu(f"v_mov_b32 v{m}, 0xff7fffff",[],R(m))
    g.salu("s_mov_b32 s30, 0")
    g.label("L_slow_loop")
    g.salu("s_mov_b32 m0, s48")
    g.nop(0)
    for k in range(2): g.raw(f"buffer_load_dwordx4 v{vD}, s[16:19], s30 offen offset:{1024*k} lds","vmem",R(vD),[],load=False)
    g.salu("s_add_u32 m0, s48, 2048")
    g.nop(0)
    for k in range(2): g.raw(f"buffer_load_dwordx4 v{vD}, s[24:27], s30 offen offset:{1024*k} lds","vmem",R(vD),[],load=False)
    g.wait(vm=0)
    for rho in range(4): g.dsread("ds_read_b64",KFr+2*rho,2,vK,8*rho)
    for i in range(4): g.dsread("ds_read_b64_tr_b16",VFr+2*i,2,T+9,[0,224,896,1120][i])
    g.wait(lgkm=0)
    for k in range(2): g.valu(f"v_and_b32 v{KFr+k}, v{KFr+k}, v{T+11}",R(KFr+k)+R(T+11),R(KFr+k))
    g.nop(1)
    g.mfma(Sr,KFr,Qr,None); g.mfma(Sr,KFr+4,Qr+4,Sr)
    g.nop(11)
    t=T+12
    g.valu(f"v_max3_f32 v{t}, v{Sr}, v{Sr+1}, v{m}",R(Sr,2)+R(m),R(t))
    for k in range(1,8): g.valu(f"v_max3_f32 v{t}, v{Sr+2*k}, v{Sr+2*k+1}, v{t}",R(Sr+2*k,2)+R(t),R(t))
    g.valu(f"v_mov_b32 v{t+1}, v{t}",R(t),R(t+1))
    g.nop(1)
    g.valu(f"v_permlane32_swap_b32 v{t}, v{t+1}",R(t,2),R(t,2))
    g.nop(1)
    g.valu(f"v_max_f32 v{t}, v{t}, v{t+1}",R(t,2),R(t))
    g.valu(f"v_sub_f32 v{t+1}, v{m}, v{t}",R(m)+R(t),R(t+1))
    g.valu(f"v_exp_f32 v{t+1}, v{t+1}",R(t+1),R(t+1),trans=True)
    g.valu(f"v_mov_b32 v{m}, v{t}",R(t),R(m))
    for k in range(16): g.valu(f"v_sub_f32 v{Sr+k}, v{Sr+k}, v{t}",R(Sr+k)+R(t),R(Sr+k))
    for k in range(16): g.exp(Sr+k)
    for k in range(16): g.valu(f"v_mul_f32 v{A+k}, v{A+k}, v{t+1}",R(A+k)+R(t+1),R(A+k))
    g.nop(1)
    g.smfmac(A,VFr,Sr,vIDX); g.smfmac(A,VFr+4,Sr+8,vIDX)
    g.nop(11)
    g.salu(f"s_add_u32 s30, s30, {TILE}")
    g.salu(f"s_cmp_lt_u32 s30, {HEADB}")
    g.salu("s_cbranch_scc1 L_slow_loop")
    g.valu(f"v_mov_b32 v{T+2}, v{A+12}",R(A+12),R(T+2))
    g.valu(f"v_mov_b32 v{T+3}, v{A+12}",R(A+12),R(T+3))
    g.nop(1)
    g.valu(f"v_permlane32_swap_b32 v{T+2}, v{T+3}",R(T+2,2),R(T+2,2))
    g.nop(1)
    g.salu("s_branch L_final")
    e=g.check()
    if e: print("slow path errs:",e,file=sys.stderr)
    return g

HDR=f"""; Fused attention, B*H=32 heads, S=2048, Dh=28 (bf16).
; @launch grid=(256,1,1) block=(512,1,1) lds={LDS}
.amdgcn_target "amdgcn-amd-amdhsa--gfx950"
.text
.globl {NAME}_kernel
.p2align 8
.type {NAME}_kernel,@function
{NAME}_kernel:
"""
FTR=f""".section .rodata,"a"
.p2align 6
.amdhsa_kernel {NAME}_kernel
  .amdhsa_next_free_vgpr {NV}
  .amdhsa_next_free_sgpr 96
  .amdhsa_accum_offset {NV}
  .amdhsa_group_segment_fixed_size 0
  .amdhsa_kernarg_size 48
  .amdhsa_user_sgpr_count 2
  .amdhsa_user_sgpr_kernarg_segment_ptr 1
  .amdhsa_system_sgpr_workgroup_id_x 1
.end_amdhsa_kernel
"""
if __name__=="__main__":
    opt={}
    out=sys.argv[1]
    for a in sys.argv[2:]:
        k,_,v=a.partition("="); opt[k]=v or 1
    g,sl,errs=build(opt)
    for e in errs: print("HAZARD:",e,file=sys.stderr)
    open(out,"w").write(HDR+g.text()+sl.text()+FTR)
```

```python
import sys, math, struct
from asmlib import *

NAME="standalone__fused_io_aware_attn__prompt"
HEADB=114688; BLK=7168; TILE=1792
KRING=0; NSLOT=8; VRING=NSLOT*BLK; ONES=2*NSLOT*BLK; XCH=ONES+4096; LDS=XCH+32768
def f2u(x): return struct.unpack("<I",struct.pack("<f",x))[0]
CSC=math.log2(math.e)/math.sqrt(28.0)

vXR=0; vXW=1; vLANE=2; vK=3; vD=4; vQO=5
vVA=6
vOUT=14; vIDX=15
vV=16; vQ=32; vKF=48; vS=64; vO=128
vX=160
vT=176
NV=192
NU=64

class G(Prog):
    def __init__(s, opt):
        super().__init__(); s.opt=opt; s.q=[]
    def ldsread(s, op, d, n, addr, off):
        s.dsread(op,d,n,addr,off); s.q.append(set(R(d,n)))
    def ldswrite(s, op, addr, d, n, off):
        s.dswrite(op,addr,d,n,off); s.q.append(set(["W"]))
    def need(s, regs):
        regs=set(regs); last=-1
        for k,x in enumerate(s.q):
            if x&regs: last=k
        if last>=0:
            n=len(s.q)-1-last
            s.wait(lgkm=n); s.q=s.q[last+1:]
    def stamp(s, k):
        if s.opt.get("stamps") or s.opt.get("enc"):
            s.raw(f"{'s_memrealtime' if s.opt.get('rt') else 's_memtime'} s[{60+2*k}:{61+2*k}]","salu")
    def barrier(s): s.raw("s_barrier","salu")
    def v(s, text, rd, wr): s.valu(text, rd, wr)

def S(u): return vS+16*(u&3)
def KF(j): return vKF+8*(j&1)
def VF(j): return vV+8*(j&1)
def kread(g,j,rho):
    n=j>>1; kt=j&1
    g.ldsread("ds_read_b64", KF(j)+2*rho, 2, vK, KRING+(n%NSLOT)*BLK+kt*TILE+8*rho)
def vread(g,j,i):
    n=j>>1; kt=j&1
    g.ldsread("ds_read_b64_tr_b16", VF(j)+2*i, 2, vVA+(n%NSLOT), kt*TILE+[0,224,896,1120][i])
def dma(g,b,k):
    if k==0:
        g.salu(f"s_add_u32 m0, s31, {(b%NSLOT)*BLK}")
        g.salu(f"s_add_u32 s30, s34, {b*BLK}")
    fl=g.opt.get("dflag","").replace("+"," ") if b<int(g.opt.get("dfn",16)) else ""
    g.raw(f"buffer_load_dwordx4 v{vD}, s[16:19], s30 offen offset:{1024*k} {fl} lds","vmem",R(vD),[],load=False)

def build(opt):
    g=G(opt); T=vT
    m=int(opt.get("tail",4))
    t0=NU-2*m
    seq=[(u>>1,u&1) for u in range(NU)]
    seq[0],seq[1]=seq[1],seq[0]
    seq[t0:]=[(32-m+i,0) for i in range(m)]+[(32-m+i,1) for i in range(m)]
    def M1(u): j,t=seq[u]; g.need(R(KF(j),4)+R(vQ+8*t,4)); g.mfma(S(u), KF(j), vQ+8*t, None)
    def M2(u): j,t=seq[u]; g.need(R(KF(j)+4,4)+R(vQ+8*t+4,4)); g.mfma(S(u), KF(j)+4, vQ+8*t+4, S(u))
    def P1(u): j,t=seq[u]; g.need(R(VF(j),4)); g.smfmac(vO+16*t, VF(j), S(u), vIDX)
    def P2(u): j,t=seq[u]; g.need(R(VF(j)+4,4)); g.smfmac(vO+16*t, VF(j)+4, S(u)+8, vIDX)
    g.salu("s_cmp_ge_u32 s2, 0x100")
    g.salu("s_cbranch_scc1 L_end")
    g.salu("s_load_dwordx8 s[4:11], s[0:1], 0x0")
    g.salu("s_setprio 3")
    g.stamp(0)
    g.v("v_lshrrev_b32 v1, 6, v0",["v0"],["v1"])
    g.v(f"v_and_b32 v{vLANE}, 63, v0",["v0"],R(vLANE))
    g.v("v_readfirstlane_b32 s28, v1",["v1"],[])
    g.salu("s_and_b32 s3, s2, 7")
    g.salu("s_lshr_b32 s29, s2, 6")
    g.salu("s_lshl_b32 s29, s29, 3")
    g.salu("s_add_u32 s3, s3, s29")
    g.salu(f"s_mul_i32 s29, s3, {HEADB}")
    g.salu("s_bfe_u32 s33, s2, 0x30003")
    g.salu("s_mul_i32 s33, s33, 14336")
    g.salu("s_add_u32 s33, s33, s29")
    g.v(f"v_and_b32 v{T}, 31, v{vLANE}",R(vLANE),R(T))
    g.v(f"v_lshrrev_b32 v{T+1}, 5, v{vLANE}",R(vLANE),R(T+1))
    g.v(f"v_mul_u32_u24 v{T}, 56, v{T}",R(T),R(T))
    g.v(f"v_mad_u32_u24 v{vQO}, v{T+1}, 24, v{T}",R(T,2),R(vQO))
    g.v(f"v_lshlrev_b32 v{vD}, 4, v{vLANE}",R(vLANE),R(vD))
    g.salu("s_and_b32 s35, s28, 3")
    g.salu("s_lshr_b32 s36, s28, 2")
    g.salu("s_mul_i32 s35, s35, 3584")
    g.salu(f"s_mul_i32 s37, s36, {TILE}")
    g.salu("s_add_u32 s38, s35, s37")
    g.salu("s_and_b32 s39, s28, 1")
    g.salu("s_lshl_b32 s34, s36, 1")
    g.salu("s_add_u32 s34, s34, s39")
    g.salu("s_lshl_b32 s34, s34, 11")
    g.salu("s_min_u32 s34, s34, 5120")
    g.salu("s_mov_b32 s14, 14336")
    g.salu("s_mov_b32 s15, 0x20000")
    g.salu(f"s_mov_b32 s18, {HEADB}")
    g.salu("s_mov_b32 s19, 0x20000")
    g.salu("s_bitcmp1_b32 s28, 1")
    g.salu(f"s_cselect_b32 s31, {VRING}, {KRING}")
    g.salu("s_add_u32 s31, s31, s34")
    g.v(f"v_mov_b32 v{T+2}, 0x3f80",[],R(T+2))
    g.v(f"v_mov_b32 v{T+3}, 0",[],R(T+3))
    g.v(f"v_lshlrev_b32 v{T+4}, 3, v0",["v0"],R(T+4))
    g.v(f"v_add_u32 v{T+4}, {ONES}, v{T+4}",R(T+4),R(T+4))
    g.wait(lgkm=0)
    g.stamp(1)
    g.salu("s_add_u32 s12, s4, s33")
    g.salu("s_addc_u32 s13, s5, 0")
    for k in range(2):
        g.raw(f"buffer_load_dwordx4 {vr(vQ+8+4*k,4)}, v{vQO}, s[12:15], s38 offen offset:{16*k} {opt.get('qflag','')}","vmem",R(vQO),R(vQ+8+4*k,4),load=True)
    g.salu("s_setprio 2")
    g.salu("s_bitcmp1_b32 s28, 1")
    g.salu("s_cselect_b32 s16, s8, s6")
    g.salu("s_cselect_b32 s17, s9, s7")
    g.salu("s_add_u32 s16, s16, s29")
    g.salu("s_addc_u32 s17, s17, 0")
    for b in range(2):
        for k in range(2): dma(g,b,k)
        g.salu(f"s_setprio {1-b}")
    g.stamp(2)
    g.ldswrite("ds_write_b64",T+4,T+2,2,0)
    g.salu("s_add_u32 s20, s10, s33")
    g.salu("s_addc_u32 s21, s11, 0")
    g.salu("s_mov_b32 s22, 14336")
    g.salu("s_mov_b32 s23, 0x20000")
    g.salu("s_mov_b32 s44, 0x5f800000")
    g.salu("s_mov_b64 s[46:47], 0")
    g.v(f"v_mov_b32 v{T+10}, 0x{f2u(CSC):08x}",[],R(T+10))
    g.v(f"v_mov_b32 v{T+11}, 0x{f2u(CSC):08x}",[],R(T+11))
    g.v(f"v_cmp_eq_u32 vcc, 0, v{T+1}",R(T+1),[])
    g.v(f"v_mov_b32 v{T+14}, 0xffff0000",[],R(T+14))
    for k in range(4): g.v(f"v_mov_b32 v{vX+k}, 0",[],R(vX+k))
    g.v(f"v_cndmask_b32 v{T+12}, 0, v{T+10}, vcc",R(T+10),R(T+12))
    g.v(f"v_cndmask_b32 v{T+13}, 0, v{T+10}, vcc",R(T+10),R(T+13))
    g.mfma(vO,vX,vX,None)
    g.mfma(vO+16,vX,vX,None)
    g.salu("s_mul_i32 s41, s36, 3584")
    g.v(f"v_add_u32 v{vK}, s41, v{vQO}",R(vQO),R(vK))
    g.salu("s_lshl_b32 s48, s28, 11")
    g.v(f"v_lshl_add_u32 v{vOUT}, v{T+1}, 5, v{T}",R(T,2),R(vOUT))
    g.v(f"v_add_u32 v{vOUT}, s48, v{vOUT}",R(vOUT),R(vOUT))
    g.salu("s_lshl_b32 s42, s28, 12")
    g.salu(f"s_add_u32 s42, s42, {XCH}")
    g.v(f"v_add_u32 v{vXW}, s42, v{vD}",R(vD),R(vXW))
    g.salu("s_xor_b32 s42, s28, 4")
    g.salu("s_lshl_b32 s42, s42, 12")
    g.salu(f"s_add_u32 s42, s42, {XCH}")
    g.v(f"v_add_u32 v{vXR}, s42, v{vD}",R(vD),R(vXR))
    g.salu(f"s_add_u32 s41, s41, {VRING}")
    g.v(f"v_bfe_u32 v{T+5}, v{vLANE}, 2, 2",R(vLANE),R(T+5))
    g.v(f"v_lshl_add_u32 v{T+5}, v{T+1}, 3, v{T+5}",R(T+1)+R(T+5),R(T+5))
    g.v(f"v_mul_u32_u24 v{T+5}, 56, v{T+5}",R(T+5),R(T+5))
    g.v(f"v_and_b32 v{T+6}, 16, v{vLANE}",R(vLANE),R(T+6))
    g.v(f"v_add3_u32 v{T+5}, v{T+5}, v{T+6}, s41",R(T+5,2),R(T+5))
    g.v(f"v_and_b32 v{T+6}, 2, v{vLANE}",R(vLANE),R(T+6))
    g.v(f"v_lshl_add_u32 v{T+5}, v{T+6}, 2, v{T+5}",R(T+5,2),R(T+5))
    g.v(f"v_and_b32 v{T+6}, 1, v{vLANE}",R(vLANE),R(T+6))
    g.v(f"v_lshl_add_u32 v{T+5}, v{T+6}, 5, v{T+5}",R(T+5,2),R(T+5))
    g.v(f"v_and_b32 v{T+6}, 0x13, v{vLANE}",R(vLANE),R(T+6))
    g.v(f"v_cmp_eq_u32 vcc, 0x13, v{T+6}",R(T+6),[])
    g.v(f"v_lshlrev_b32 v{T+7}, 6, v{T+1}",R(T+1),R(T+7))
    g.v(f"v_sub_u32 v{T+7}, {ONES+224}, v{T+7}",R(T+7),R(T+7))
    g.v(f"v_mov_b32 v{T+8}, {BLK}",[],R(T+8))
    g.v(f"v_cndmask_b32 v{vVA}, v{T+5}, v{T+7}, vcc",R(T+5)+R(T+7),R(vVA))
    g.v(f"v_cndmask_b32 v{T+8}, v{T+8}, 0, vcc",R(T+8),R(T+8))
    for k in range(1,NSLOT):
        g.v(f"v_add_u32 v{vVA+k}, v{vVA+k-1}, v{T+8}",R(vVA+k-1)+R(T+8),R(vVA+k))
    g.v(f"v_mov_b32 v{vIDX}, 0xdddddddd",[],R(vIDX))
    for k in range(8):
        if k%4==0: g.wait(vm=5-k//4)
        r=vQ+8+k; t=vX+2*k
        cc=T+12 if k<2 else T+10
        g.v(f"v_lshlrev_b32 v{t}, 16, v{r}",R(r),R(t))
        g.v(f"v_and_b32 v{t+1}, v{T+14}, v{r}",R(r)+R(T+14),R(t+1))
        g.v(f"v_pk_mul_f32 {vr(t,2)}, {vr(t,2)}, {vr(cc,2)}",R(t,2)+R(cc,2),R(t,2))
        g.v(f"v_cvt_pk_bf16_f32 v{r}, v{t}, v{t+1}",R(t,2),R(r))
        if k%4==3: g.ldswrite("ds_write_b128",vXW,vQ+8+(k&4),4,1024*(k>>2))
    g.stamp(3)
    g.wait(vm=2,lgkm=0); g.q=[]
    g.barrier()
    g.stamp(4)
    for rho in range(4): kread(g,0,rho)
    for k in range(2): g.ldsread("ds_read_b128",vQ+4*k,4,vXR,1024*k)
    for rho in range(4): kread(g,1,rho)
    for i in range(4): vread(g,0,i)
    M1(0); M2(0)
    dma(g,2,0); dma(g,2,1)
    g.nop(7)
    dma_at={12:8,14:9,16:10,28:11,29:12,30:13,31:14,40:15}
    fs=[int(x) for x in opt.get("fs","1,2,3,5,6").split(",")]
    for n,b in enumerate(range(3,8)): dma_at[fs[n]]=b
    issued=lambda u: 3+len([x for x in fs if x<=u])
    lastsync=min(56,t0+2-3) if m>2 else 56
    lastsync=int(opt.get("ls",52))
    sync_before={4:2*(issued(3)-4),12:0,28:0,40:0,lastsync:0}
    xbar=4*63
    lv={}
    fr=[float(x) for x in opt.get("lv","0.75,0.92,0.975").split(",")]
    bars=[0,3]+[4*(x-1)+3 for x in sorted(sync_before)]+[xbar]
    for si,(a,b) in enumerate(zip(bars[:-1],bars[1:])):
        lv[a]=3
        for n,f in enumerate([float(x) for x in opt[f"lv{si}"].split(",")] if f"lv{si}" in opt else fr):
            p=a+int(round((b-a)*f))
            if a<p<b: lv[p]=2-n
    lv[xbar]=0
    plan={}
    def put(u,k,f): plan.setdefault((u,k),[]).append(f)
    first={}
    for u in range(NU): first.setdefault(seq[u][0],u)
    for j in range(2,32-m+1):
        u=2*(j-2)
        for r in range(4):
            if j==2: put(1,r//2,lambda j=j,r=r: kread(g,j,r))
            else: put(u,r,lambda j=j,r=r: kread(g,j,r))
    for j in range(1,32-m):
        u=2*(j-1)+1
        for i in range(4):
            if j==1: put(1,2+i//2,lambda j=j,i=i: vread(g,j,i))
            else: put(u,i,lambda j=j,i=i: vread(g,j,i))
    for u in range(t0+1,NU):
        for r in range(4): put(u-3,r//2,lambda j=seq[u][0],r=r: kread(g,j,r))
    for u in range(t0,NU):
        for i in range(4): put(u-1,(2+i//2) if u-1<62 else i//2,lambda j=seq[u][0],i=i: vread(g,j,i))
    wslot=t0+m+1
    wpos=[(wslot,1),(wslot,2),(wslot,3),(wslot+1,0)] if wslot<62 else [(62,1),(62,1),(62,2),(62,2)]
    for k in range(4): put(*wpos[k],lambda k=k: g.ldswrite("ds_write_b128",vXW,vO+4*k,4,1024*k))
    for u in range(NU):
        g.comment(f"slot {u} tile {seq[u]}")
        if opt.get("fine"):
            f0,fst=[int(x) for x in (opt["fine"] if opt["fine"]!=1 else "0,4").split(",")]
            if u>=f0 and (u-f0)%fst==0 and (u-f0)//fst<16:
                k=(u-f0)//fst
                g.salu(f"s_memtime s[{60+2*k}:{61+2*k}]")
        E=[S(u)+k for k in range(16)]
        def ex(a,b):
            for k in range(a,b): g.exp(E[k])
        def setlv(k):
            if 4*u+k in lv: g.salu(f"s_setprio {lv[4*u+k]}")
        def after(k,dolv=True):
            if dolv: setlv(k)
            if u in dma_at and k in(0,2): dma(g,dma_at[u],k//2)
            for f in plan.get((u,k),[]): f()
        def pre(u2,which):
            if u2>=NU: return
            j,t=seq[u2]
            if which=="K": g.need(R(KF(j),8)+R(vQ+8*t,8))
            elif which=="Vl": g.need(R(VF(j),4))
            else: g.need(R(VF(j),8))
        if u==0:
            ex(0,2); M1(1); after(0)
            ex(2,6); M2(1); pre(2,"K"); after(1)
            ex(6,10); M1(2); pre(0,"V"); after(2)
            ex(10,14); P1(0)
            g.wait(vm=2); g.barrier(); setlv(3)
            ex(14,16)
        elif u==1:
            M2(2); after(0)
            ex(0,3); M1(3); after(1)
            ex(3,6); M2(3); after(2)
            ex(6,10); P2(0); after(3)
            ex(10,13); P1(1); pre(4,"K")
            ex(13,16)
        elif u+2<NU:
            M1(u+2); after(0)
            ex(0,4); M2(u+2)
            if u>t0: pre(u-1,"V")
            after(1)
            ex(4,8); P2(u-1)
            pre(u,"Vl" if u>=t0 else "V"); after(2)
            ex(8,12); P1(u); pre(u+3,"K"); after(3,(u+1) not in sync_before)
            if (u+1) in sync_before:
                g.wait(vm=sync_before[u+1]); g.barrier(); setlv(3)
            ex(12,16)
        elif u==62:
            ex(0,2); P2(61); after(0)
            ex(2,6); after(1)
            ex(6,10); P1(62); after(2); setlv(3)
            ex(10,16)
        elif u==63:
            ex(0,2); P2(62)
            g.wait(lgkm=0); g.q=[]
            g.barrier(); setlv(0)
            for k in range(4): g.ldsread("ds_read_b128",vX+4*k,4,vXR,1024*k)
            ex(2,10); P1(63)
            ex(10,16)
    g.stamp(5)
    if opt.get("fine"): g.salu(f"s_memtime s[92:93]")
    g.need(R(vX,16))
    g.nop(0)
    P2(NU-1)
    A=vO+16
    g.v(f"v_add_u32 v{T+9}, s48, v{vD}",R(vD),R(T+9))
    g.nop(10)
    def pk(op,d,a,b): g.v(f"{op} {vr(d,2)}, {vr(a,2)}, {vr(b,2)}",R(a,2)+R(b,2),R(d,2))
    pk("v_pk_add_f32",A+12,A+12,vX+12)
    pk("v_pk_add_f32",A+0,A+0,vX+0)
    g.v(f"v_mov_b32 v{T+2}, v{A+12}",R(A+12),R(T+2))
    g.v(f"v_mov_b32 v{T+3}, v{A+12}",R(A+12),R(T+3))
    pk("v_pk_add_f32",A+2,A+2,vX+2)
    pk("v_pk_add_f32",A+4,A+4,vX+4)
    g.v(f"v_permlane32_swap_b32 v{T+2}, v{T+3}",R(T+2,2),R(T+2,2))
    pk("v_pk_add_f32",A+6,A+6,vX+6)
    g.label("L_final")
    g.valu(f"v_rcp_f32 v{T+4}, v{T+3}",R(T+3),R(T+4),trans=True)
    for k in (8,10,14): pk("v_pk_add_f32",A+k,A+k,vX+k)
    def pkm(k): g.v(f"v_pk_mul_f32 {vr(vS+16+k,2)}, {vr(A+k,2)}, {vr(T+4,2)} op_sel_hi:[1,0]",R(A+k,2)+R(T+4),R(vS+16+k,2))
    def cvt(k): g.v(f"v_cvt_pk_bf16_f32 v{vS+k}, v{vS+16+2*k}, v{vS+17+2*k}",R(vS+16+2*k,2),R(vS+k))
    pkm(0); pkm(2); cvt(0); cvt(1)
    pkm(4); pkm(6); g.dswrite("ds_write_b64",vOUT,vS,2,0); cvt(2); cvt(3)
    pkm(8); pkm(10); g.dswrite("ds_write_b64",vOUT,vS+2,2,8); cvt(4); cvt(5)
    pkm(12); pkm(14); g.dswrite("ds_write_b64",vOUT,vS+4,2,16); cvt(6); cvt(7)
    g.salu("s_mov_b32 exec_hi, 0")
    g.dswrite("ds_write_b64",vOUT,vS+6,2,24)
    g.salu("s_mov_b32 exec_hi, -1")
    pk("v_pk_add_f32",T+6,A,A+2)
    pk("v_pk_add_f32",T+10,A+4,A+6)
    pk("v_pk_add_f32",T+12,A+8,A+10)
    pk("v_pk_add_f32",T+14,A+12,A+14)
    g.wait(lgkm=0)
    g.dsread("ds_read_b128",vS+8,4,T+9,0)
    g.dsread("ds_read_b128",vS+12,4,T+9,1024)
    pk("v_pk_add_f32",T+6,T+6,T+10)
    pk("v_pk_add_f32",T+12,T+12,T+14)
    pk("v_pk_add_f32",T+6,T+6,T+12)
    g.v(f"v_add_f32 v{T+6}, v{T+6}, v{T+7}",R(T+6,2),R(T+6))
    g.v(f"v_fma_f32 v{T+6}, v{T+6}, 0, v{T+3}",R(T+6)+R(T+3),R(T+6))
    g.v(f"v_cmp_le_f32 vcc, 1.0, v{T+6}",R(T+6),[])
    g.v(f"v_cmp_ge_f32 s[42:43], s44, v{T+6}",R(T+6),[])
    g.nop(3)
    g.salu("s_and_b64 vcc, vcc, s[42:43]")
    g.salu("s_or_b64 vcc, vcc, s[46:47]")
    g.salu("s_cmp_eq_u64 vcc, -1")
    g.salu("s_cbranch_scc0 L_slow")
    sfx=opt.get("stflag","sc1").replace("+"," ")
    g.wait(lgkm=1)
    g.raw(f"buffer_store_dwordx4 {vr(vS+8,4)}, v{vD}, s[20:23], s38 offen {sfx}","vmem",R(vS+8,4)+R(vD),[],load=False)
    g.salu("s_mov_b32 exec_hi, 0xffff")
    g.wait(lgkm=0)
    g.raw(f"buffer_store_dwordx4 {vr(vS+12,4)}, v{vD}, s[20:23], s38 offen offset:1024 {sfx}","vmem",R(vS+12,4)+R(vD),[],load=False)
    if opt.get("stamps") or opt.get("fine"):
        g.salu("s_mov_b64 exec, -1")
        g.stamp(6); g.wait(vm=0); g.stamp(7)
        g.salu("s_load_dwordx2 s[50:51], s[0:1], 0x28")
        g.wait(lgkm=0)
        g.valu("v_mov_b32 v1, 0",[],["v1"])
        if opt.get("fine"):
            for k in range(17): g.raw(f"v_writelane_b32 v1, s{60+2*k}, {k}","valu")
        else:
            for k in range(8): g.raw(f"v_writelane_b32 v1, s{60+2*k}, {k}","valu")
            g.salu("s_getreg_b32 s52, hwreg(HW_REG_HW_ID)")
            g.raw(f"v_writelane_b32 v1, s52, 8","valu")
            g.salu("s_getreg_b32 s52, hwreg(HW_REG_XCC_ID)")
            g.raw(f"v_writelane_b32 v1, s52, 9","valu")
        g.salu("s_lshl_b32 s52, s2, 3")
        g.salu("s_add_u32 s52, s52, s28")
        g.salu("s_lshl_b32 s52, s52, 8")
        g.valu(f"v_lshl_add_u32 v0, v{vLANE}, 2, s52",R(vLANE),["v0"])
        g.raw("global_store_dword v0, v1, s[50:51]","vmem")
    if opt.get("enc"):
        a,b,mul=[int(x) for x in opt["enc"].split(",")]
        g.salu("s_mov_b64 exec, -1")
        g.stamp(6); g.wait(vm=0); g.stamp(7)
        g.wait(lgkm=0)
        g.salu(f"s_sub_u32 s52, s{60+2*b}, s{60+2*a}")
        g.salu(f"s_mul_i32 s52, s52, {mul}")
        g.label("L_spin")
        g.salu(("s_memrealtime" if opt.get("rt") else "s_memtime")+" s[54:55]")
        g.wait(lgkm=0)
        g.salu("s_sub_u32 s53, s54, s74")
        g.salu("s_cmp_lt_u32 s53, s52")
        g.salu("s_cbranch_scc1 L_spin")
    g.label("L_end")
    g.raw("s_endpgm","salu")
    errs=g.check()
    return g, slow_path(opt), errs

def slow_path(opt):
    g=G({}); T=vT
    A=vO+16; Qr=vQ+8; KFr=vKF; VFr=vV; Sr=vS; m=T+8; VA=vVA+1; MK=vVA+2
    g.label("L_slow")
    g.wait(lgkm=0)
    g.salu("s_mov_b64 s[46:47], -1")
    g.salu("s_add_u32 s16, s6, s29"); g.salu("s_addc_u32 s17, s7, 0")
    g.salu("s_add_u32 s24, s8, s29"); g.salu("s_addc_u32 s25, s9, 0")
    g.salu(f"s_mov_b32 s26, {HEADB}"); g.salu("s_mov_b32 s27, 0x20000")
    g.salu("s_lshl_b32 s49, s28, 12")
    g.salu(f"s_add_u32 s49, s49, {VRING}")
    g.v(f"v_add_u32 v{vK}, s49, v{vQO}",R(vQO),R(vK))
    g.salu("s_mul_i32 s41, s36, 3584")
    g.salu(f"s_add_u32 s41, s41, {VRING-2048}")
    g.salu("s_sub_u32 s41, s49, s41")
    g.v(f"v_add_u32 v{VA}, s41, v{vVA}",R(vVA),R(VA))
    g.v(f"v_and_b32 v{T+10}, 0x13, v{vLANE}",R(vLANE),R(T+10))
    g.v(f"v_cmp_eq_u32 vcc, 0x13, v{T+10}",R(T+10),[])
    g.nop(1)
    g.v(f"v_cndmask_b32 v{VA}, v{VA}, v{vVA}, vcc",R(VA)+R(vVA),R(VA))
    g.v(f"v_cmp_gt_u32 vcc, 32, v{vLANE}",R(vLANE),[])
    g.nop(1)
    g.v(f"v_cndmask_b32 v{MK}, 0, -1, vcc",[],R(MK))
    for k in range(16): g.v(f"v_mov_b32 v{A+k}, 0",[],R(A+k))
    for k in range(16): g.v(f"v_mov_b32 v{vX+k}, 0",[],R(vX+k))
    g.v(f"v_mov_b32 v{m}, 0xff7fffff",[],R(m))
    g.salu("s_mov_b32 s30, 0")
    g.label("L_slow_loop")
    g.salu("s_mov_b32 m0, s49")
    g.nop(0)
    for k in range(2): g.raw(f"buffer_load_dwordx4 v{vD}, s[16:19], s30 offen offset:{1024*k} lds","vmem",R(vD),[],load=False)
    g.salu("s_add_u32 m0, s49, 2048")
    g.nop(0)
    for k in range(2): g.raw(f"buffer_load_dwordx4 v{vD}, s[24:27], s30 offen offset:{1024*k} lds","vmem",R(vD),[],load=False)
    g.wait(vm=0)
    for rho in range(4): g.dsread("ds_read_b64",KFr+2*rho,2,vK,8*rho)
    for i in range(4): g.dsread("ds_read_b64_tr_b16",VFr+2*i,2,VA,[0,224,896,1120][i])
    g.wait(lgkm=0)
    for k in range(2): g.v(f"v_and_b32 v{KFr+k}, v{KFr+k}, v{MK}",R(KFr+k)+R(MK),R(KFr+k))
    g.nop(1)
    g.mfma(Sr,KFr,Qr,None); g.mfma(Sr,KFr+4,Qr+4,Sr)
    g.nop(11)
    t=T+12
    g.v(f"v_max3_f32 v{t}, v{Sr}, v{Sr+1}, v{m}",R(Sr,2)+R(m),R(t))
    for k in range(1,8): g.v(f"v_max3_f32 v{t}, v{Sr+2*k}, v{Sr+2*k+1}, v{t}",R(Sr+2*k,2)+R(t),R(t))
    g.v(f"v_mov_b32 v{t+1}, v{t}",R(t),R(t+1))
    g.nop(1)
    g.v(f"v_permlane32_swap_b32 v{t}, v{t+1}",R(t,2),R(t,2))
    g.nop(1)
    g.v(f"v_max_f32 v{t}, v{t}, v{t+1}",R(t,2),R(t))
    g.v(f"v_sub_f32 v{t+1}, v{m}, v{t}",R(m)+R(t),R(t+1))
    g.valu(f"v_exp_f32 v{t+1}, v{t+1}",R(t+1),R(t+1),trans=True)
    g.v(f"v_mov_b32 v{m}, v{t}",R(t),R(m))
    for k in range(16): g.v(f"v_sub_f32 v{Sr+k}, v{Sr+k}, v{t}",R(Sr+k)+R(t),R(Sr+k))
    for k in range(16): g.exp(Sr+k)
    for k in range(16): g.v(f"v_mul_f32 v{A+k}, v{A+k}, v{t+1}",R(A+k)+R(t+1),R(A+k))
    g.nop(1)
    g.smfmac(A,VFr,Sr,vIDX); g.smfmac(A,VFr+4,Sr+8,vIDX)
    g.nop(11)
    g.salu(f"s_add_u32 s30, s30, {TILE}")
    g.salu(f"s_cmp_lt_u32 s30, {HEADB}")
    g.salu("s_cbranch_scc1 L_slow_loop")
    g.v(f"v_mov_b32 v{T+2}, v{A+12}",R(A+12),R(T+2))
    g.v(f"v_mov_b32 v{T+3}, v{A+12}",R(A+12),R(T+3))
    g.nop(1)
    g.v(f"v_permlane32_swap_b32 v{T+2}, v{T+3}",R(T+2,2),R(T+2,2))
    g.nop(1)
    g.salu("s_branch L_final")
    e=g.check()
    if e: print("slow path errs:",e,file=sys.stderr)
    return g

HDR=f"""; Fused attention, B*H=32 heads, S=2048, Dh=28 (bf16).
; @launch grid=(256,1,1) block=(512,1,1) lds={LDS}
.amdgcn_target "amdgcn-amd-amdhsa--gfx950"
.text
.globl {NAME}_kernel
.p2align 8
.type {NAME}_kernel,@function
{NAME}_kernel:
"""
FTR=f""".section .rodata,"a"
.p2align 6
.amdhsa_kernel {NAME}_kernel
  .amdhsa_next_free_vgpr {NV}
  .amdhsa_next_free_sgpr 96
  .amdhsa_accum_offset {NV}
  .amdhsa_group_segment_fixed_size 0
  .amdhsa_kernarg_size 48
  .amdhsa_user_sgpr_count 2
  .amdhsa_user_sgpr_kernarg_segment_ptr 1
  .amdhsa_system_sgpr_workgroup_id_x 1
.end_amdhsa_kernel
"""
if __name__=="__main__":
    opt={}
    out=sys.argv[1]
    for a in sys.argv[2:]:
        k,_,v=a.partition("="); opt[k]=v or 1
    g,sl,errs=build(opt)
    for e in errs: print("HAZARD:",e,file=sys.stderr)
    open(out,"w").write(HDR+g.text()+sl.text()+FTR)
```

```python
import sys, math, struct
from asmlib import *

NAME="standalone__fused_io_aware_attn__prompt"
HEADB=114688; BLK=7168; TILE=1792
KRING=0; NSLOT=8; VRING=NSLOT*BLK; ONES=2*NSLOT*BLK; XCH=ONES+4096; LDS=XCH+32768
def f2u(x): return struct.unpack("<I",struct.pack("<f",x))[0]
CSC=math.log2(math.e)/math.sqrt(28.0)

vXR=0; vXW=1; vLANE=2; vK=3; vD=4; vQO=5
vVA=6
vOUT=14; vIDX=15
vV=16; vQ=32; vKF=48; vS=64; vO=128
vX=160
vT=176
vKo=192; vVo0=193; vVo7=194; vST=195
NV=200
NU=64

class G(Prog):
    def __init__(s, opt):
        super().__init__(); s.opt=opt; s.q=[]
    def ldsread(s, op, d, n, addr, off):
        s.dsread(op,d,n,addr,off); s.q.append(set(R(d,n)))
    def ldswrite(s, op, addr, d, n, off):
        s.dswrite(op,addr,d,n,off); s.q.append(set(["W"]))
    def need(s, regs):
        regs=set(regs); last=-1
        for k,x in enumerate(s.q):
            if x&regs: last=k
        if last>=0:
            n=len(s.q)-1-last
            s.wait(lgkm=n); s.q=s.q[last+1:]
    def stamp(s, k):
        if s.opt.get("stamps") or s.opt.get("enc"):
            s.raw(f"{'s_memrealtime' if s.opt.get('rt') else 's_memtime'} s[{60+2*k}:{61+2*k}]","salu")
    def barrier(s): s.raw("s_barrier","salu")
    def v(s, text, rd, wr): s.valu(text, rd, wr)

def S(u): return vS+16*(u&3)
def tile(u):
    if u<4:   return (0,u&1,u>>1,u&1,1)
    if u>=60: return (15,u&1,(u-60)>>1,u&1,1)
    j=u>>1;   return (j>>1,j&1,0,j&1,u&1)
def KB(u): return vKF+8*tile(u)[3]
def VB(u): return vV+8*tile(u)[3]
def QB(u): return vQ+8*tile(u)[4]
def OB(u): return vO+16*tile(u)[4]
def kread(g,u,rho):
    n,kt,o,b,t=tile(u)
    g.ldsread("ds_read_b64", KB(u)+2*rho, 2, vKo if o else vK, KRING+(n%NSLOT)*BLK+kt*TILE+8*rho)
def vread(g,u,i):
    n,kt,o,b,t=tile(u)
    a=(vVo0 if n==0 else vVo7) if o else vVA+(n%NSLOT)
    g.ldsread("ds_read_b64_tr_b16", VB(u)+2*i, 2, a, kt*TILE+[0,224,896,1120][i])
def dma(g,b,k):
    if k==0:
        g.salu(f"s_add_u32 m0, s31, {(b%NSLOT)*BLK}")
        g.salu(f"s_add_u32 s30, s34, {b*BLK}")
    g.raw(f"buffer_load_dwordx4 v{vD}, s[16:19], s30 offen offset:{1024*k} lds","vmem",R(vD),[],load=False)

def build(opt):
    g=G(opt); T=vT
    def M1(u): g.need(R(KB(u),4)+R(QB(u),4)); g.mfma(S(u), KB(u), QB(u), None)
    def M2(u): g.need(R(KB(u)+4,4)+R(QB(u)+4,4)); g.mfma(S(u), KB(u)+4, QB(u)+4, S(u))
    def P1(u): g.need(R(VB(u),4)); g.smfmac(OB(u), VB(u), S(u), vIDX)
    def P2(u): g.need(R(VB(u)+4,4)); g.smfmac(OB(u), VB(u)+4, S(u)+8, vIDX)
    g.salu("s_cmp_ge_u32 s2, 0x100")
    g.salu("s_cbranch_scc1 L_end")
    g.salu("s_load_dwordx8 s[4:11], s[0:1], 0x0")
    g.salu("s_setprio 3")
    g.stamp(0)
    if opt.get("cpf"):
        g.salu("s_getpc_b64 s[50:51]")
        g.label("L_pc")
        c=str(opt["cpf"])
        if c=="1":
            g.v(f"v_lshlrev_b32 v{T+15}, 7, v0",["v0"],R(T+15))
        elif c=="2":
            g.salu("s_lshr_b32 s52, s2, 3")
            g.salu("s_lshl_b32 s52, s52, 9")
            g.v(f"v_and_b32 v{T+15}, 0x1c0, v0",["v0"],R(T+15))
            g.v(f"v_add_u32 v{T+15}, s52, v{T+15}",R(T+15),R(T+15))
        elif c=="3":
            g.v(f"v_and_b32 v{T+14}, 15, v0",["v0"],R(T+14))
            g.v(f"v_lshrrev_b32 v{T+15}, 6, v0",["v0"],R(T+15))
            g.v(f"v_lshl_add_u32 v{T+15}, v{T+14}, 3, v{T+15}",R(T+14,2),R(T+15))
            g.v(f"v_lshlrev_b32 v{T+15}, 7, v{T+15}",R(T+15),R(T+15))
        elif c=="4":
            g.salu("s_bfe_u32 s52, s2, 0x20003")
            g.salu("s_lshl_b32 s52, s52, 7")
            g.v(f"v_and_b32 v{T+14}, 3, v0",["v0"],R(T+14))
            g.v(f"v_lshrrev_b32 v{T+15}, 6, v0",["v0"],R(T+15))
            g.v(f"v_lshl_add_u32 v{T+15}, v{T+14}, 3, v{T+15}",R(T+14,2),R(T+15))
            g.v(f"v_lshl_add_u32 v{T+15}, v{T+15}, 9, s52",R(T+15),R(T+15))
        g.v(f"v_min_u32 v{T+15}, L_end-L_pc, v{T+15}",R(T+15),R(T+15))
        g.raw(f"global_load_dword v{T+15}, v{T+15}, s[50:51]","vmem",R(T+15),R(T+15),load=True)
    g.v("v_lshrrev_b32 v1, 6, v0",["v0"],["v1"])
    g.v(f"v_and_b32 v{vLANE}, 63, v0",["v0"],R(vLANE))
    g.v("v_readfirstlane_b32 s28, v1",["v1"],[])
    g.salu("s_and_b32 s3, s2, 7")
    g.salu("s_lshr_b32 s29, s2, 6")
    g.salu("s_lshl_b32 s29, s29, 3")
    g.salu("s_add_u32 s3, s3, s29")
    g.salu(f"s_mul_i32 s29, s3, {HEADB}")
    g.salu("s_bfe_u32 s33, s2, 0x30003")
    g.salu("s_mul_i32 s33, s33, 14336")
    g.salu("s_add_u32 s33, s33, s29")
    g.v(f"v_and_b32 v{T}, 31, v{vLANE}",R(vLANE),R(T))
    g.v(f"v_lshrrev_b32 v{T+1}, 5, v{vLANE}",R(vLANE),R(T+1))
    g.v(f"v_mul_u32_u24 v{T}, 56, v{T}",R(T),R(T))
    g.v(f"v_mad_u32_u24 v{vQO}, v{T+1}, 24, v{T}",R(T,2),R(vQO))
    g.v(f"v_lshlrev_b32 v{vD}, 4, v{vLANE}",R(vLANE),R(vD))
    g.salu("s_and_b32 s35, s28, 3")
    g.salu("s_lshr_b32 s36, s28, 2")
    g.salu("s_mul_i32 s35, s35, 3584")
    g.salu(f"s_mul_i32 s37, s36, {TILE}")
    g.salu("s_add_u32 s38, s35, s37")
    g.salu("s_and_b32 s39, s28, 1")
    g.salu("s_lshl_b32 s34, s36, 1")
    g.salu("s_add_u32 s34, s34, s39")
    g.salu("s_lshl_b32 s34, s34, 11")
    g.salu("s_min_u32 s34, s34, 5120")
    g.salu("s_mov_b32 s14, 14336")
    g.salu("s_mov_b32 s15, 0x20000")
    g.salu(f"s_mov_b32 s18, {HEADB}")
    g.salu("s_mov_b32 s19, 0x20000")
    g.salu("s_bitcmp1_b32 s28, 1")
    g.salu(f"s_cselect_b32 s31, {VRING}, {KRING}")
    g.salu("s_add_u32 s31, s31, s34")
    g.salu("s_mov_b32 m0, s31")
    g.v(f"v_mov_b32 v{T+2}, 0x3f80",[],R(T+2))
    g.v(f"v_mov_b32 v{T+3}, 0",[],R(T+3))
    g.v(f"v_lshlrev_b32 v{T+4}, 3, v0",["v0"],R(T+4))
    g.v(f"v_add_u32 v{T+4}, {ONES}, v{T+4}",R(T+4),R(T+4))
    g.wait(lgkm=0)
    g.stamp(1)
    g.salu("s_bitcmp1_b32 s28, 1")
    g.salu("s_cselect_b32 s16, s8, s6")
    g.salu("s_cselect_b32 s17, s9, s7")
    g.salu("s_add_u32 s16, s16, s29")
    g.salu("s_addc_u32 s17, s17, 0")
    g.raw(f"buffer_load_dwordx4 v{vD}, s[16:19], s34 offen lds","vmem",R(vD),[],load=False)
    g.raw(f"buffer_load_dwordx4 v{vD}, s[16:19], s34 offen offset:1024 lds","vmem",R(vD),[],load=False)
    g.salu("s_setprio 2")
    g.salu("s_add_u32 s12, s4, s33")
    g.salu("s_addc_u32 s13, s5, 0")
    for k in range(2):
        g.raw(f"buffer_load_dwordx4 {vr(vQ+8+4*k,4)}, v{vQO}, s[12:15], s38 offen offset:{16*k}","vmem",R(vQO),R(vQ+8+4*k,4),load=True)
    g.salu("s_setprio 1")
    dma(g,1,0); dma(g,1,1)
    g.salu("s_setprio 0")
    g.stamp(2)
    g.ldswrite("ds_write_b64",T+4,T+2,2,0)
    g.salu("s_add_u32 s20, s10, s33")
    g.salu("s_addc_u32 s21, s11, 0")
    g.salu("s_mov_b32 s22, 14336")
    g.salu("s_mov_b32 s23, 0x20000")
    g.salu("s_mov_b32 s44, 0x5f800000")
    g.salu("s_mov_b64 s[46:47], 0")
    g.v(f"v_mov_b32 v{T+10}, 0x{f2u(CSC):08x}",[],R(T+10))
    g.v(f"v_mov_b32 v{T+11}, 0x{f2u(CSC):08x}",[],R(T+11))
    g.v(f"v_cmp_eq_u32 vcc, 0, v{T+1}",R(T+1),[])
    g.v(f"v_mov_b32 v{T+14}, 0xffff0000",[],R(T+14))
    for k in range(4): g.v(f"v_mov_b32 v{vX+k}, 0",[],R(vX+k))
    g.v(f"v_cndmask_b32 v{T+12}, 0, v{T+10}, vcc",R(T+10),R(T+12))
    g.v(f"v_cndmask_b32 v{T+13}, 0, v{T+10}, vcc",R(T+10),R(T+13))
    g.mfma(vO,vX,vX,None)
    g.mfma(vO+16,vX,vX,None)
    g.salu("s_mul_i32 s41, s36, 3584")
    g.salu("s_xor_b32 s40, s41, 3584")
    g.v(f"v_add_u32 v{vK}, s41, v{vQO}",R(vQO),R(vK))
    g.v(f"v_add_u32 v{vKo}, s40, v{vQO}",R(vQO),R(vKo))
    g.salu("s_lshl_b32 s48, s28, 11")
    g.v(f"v_lshl_add_u32 v{vOUT}, v{T+1}, 5, v{T}",R(T,2),R(vOUT))
    g.v(f"v_add_u32 v{vOUT}, s48, v{vOUT}",R(vOUT),R(vOUT))
    g.v(f"v_add_u32 v{vST}, s48, v{vD}",R(vD),R(vST))
    g.salu("s_lshl_b32 s42, s28, 12")
    g.salu(f"s_add_u32 s42, s42, {XCH}")
    g.v(f"v_add_u32 v{vXW}, s42, v{vD}",R(vD),R(vXW))
    g.salu("s_xor_b32 s42, s28, 4")
    g.salu("s_lshl_b32 s42, s42, 12")
    g.salu(f"s_add_u32 s42, s42, {XCH}")
    g.v(f"v_add_u32 v{vXR}, s42, v{vD}",R(vD),R(vXR))
    g.salu(f"s_add_u32 s41, s41, {VRING}")
    g.salu(f"s_add_u32 s40, s40, {VRING}")
    g.v(f"v_bfe_u32 v{T+5}, v{vLANE}, 2, 2",R(vLANE),R(T+5))
    g.v(f"v_lshl_add_u32 v{T+5}, v{T+1}, 3, v{T+5}",R(T+1)+R(T+5),R(T+5))
    g.v(f"v_mul_u32_u24 v{T+5}, 56, v{T+5}",R(T+5),R(T+5))
    g.v(f"v_and_b32 v{T+6}, 16, v{vLANE}",R(vLANE),R(T+6))
    g.v(f"v_add_u32 v{T+5}, v{T+5}, v{T+6}",R(T+5,2),R(T+5))
    g.v(f"v_and_b32 v{T+6}, 2, v{vLANE}",R(vLANE),R(T+6))
    g.v(f"v_lshl_add_u32 v{T+5}, v{T+6}, 2, v{T+5}",R(T+5,2),R(T+5))
    g.v(f"v_and_b32 v{T+6}, 1, v{vLANE}",R(vLANE),R(T+6))
    g.v(f"v_lshl_add_u32 v{T+5}, v{T+6}, 5, v{T+5}",R(T+5,2),R(T+5))
    g.v(f"v_and_b32 v{T+6}, 0x13, v{vLANE}",R(vLANE),R(T+6))
    g.v(f"v_cmp_eq_u32 vcc, 0x13, v{T+6}",R(T+6),[])
    g.v(f"v_lshlrev_b32 v{T+7}, 6, v{T+1}",R(T+1),R(T+7))
    g.v(f"v_sub_u32 v{T+7}, {ONES+224}, v{T+7}",R(T+7),R(T+7))
    g.v(f"v_add_u32 v{vVA}, s41, v{T+5}",R(T+5),R(vVA))
    g.v(f"v_add_u32 v{vVo0}, s40, v{T+5}",R(T+5),R(vVo0))
    g.v(f"v_mov_b32 v{T+8}, {BLK}",[],R(T+8))
    g.v(f"v_cndmask_b32 v{vVA}, v{vVA}, v{T+7}, vcc",R(vVA)+R(T+7),R(vVA))
    g.v(f"v_cndmask_b32 v{vVo0}, v{vVo0}, v{T+7}, vcc",R(vVo0)+R(T+7),R(vVo0))
    g.v(f"v_cndmask_b32 v{T+8}, v{T+8}, 0, vcc",R(T+8),R(T+8))
    for k in range(1,NSLOT):
        g.v(f"v_add_u32 v{vVA+k}, v{vVA+k-1}, v{T+8}",R(vVA+k-1)+R(T+8),R(vVA+k))
    g.v(f"v_mad_u32_u24 v{vVo7}, v{T+8}, 7, v{vVo0}",R(T+8)+R(vVo0),R(vVo7))
    g.v(f"v_mov_b32 v{vIDX}, 0xdddddddd",[],R(vIDX))
    g.wait(vm=4,lgkm=0); g.q=[]
    g.barrier()
    if opt.get("hp"): g.salu("s_setprio 3")
    g.stamp(3)
    npre=int(opt.get("npre",1))
    for rho in range(4): kread(g,0,rho)
    for b in range(2,2+npre): dma(g,b,0); dma(g,b,1)
    for rho in range(4): kread(g,1,rho)
    for i in range(4): vread(g,0,i)
    for k in range(8):
        if k%4==0: g.wait(vm=3+2*npre-k//4)
        r=vQ+8+k; t=vX+2*k
        cc=T+12 if k<2 else T+10
        g.v(f"v_lshlrev_b32 v{t}, 16, v{r}",R(r),R(t))
        g.v(f"v_and_b32 v{t+1}, v{T+14}, v{r}",R(r)+R(T+14),R(t+1))
        g.v(f"v_pk_mul_f32 {vr(t,2)}, {vr(t,2)}, {vr(cc,2)}",R(t,2)+R(cc,2),R(t,2))
        g.v(f"v_cvt_pk_bf16_f32 v{r}, v{t}, v{t+1}",R(t,2),R(r))
        if k==4: M1(0)
    g.stamp(4)
    g.ldswrite("ds_write_b128",vXW,vQ+8,4,0)
    g.nop(0)
    M2(0)
    for rho in range(4): kread(g,2,rho)
    M1(1)
    g.ldswrite("ds_write_b128",vXW,vQ+12,4,1024)
    g.nop(5)
    nb1=int(opt.get("nb1",1))
    dma_at={12:8,14:9,16:10,28:11,29:12,30:13,31:14,40:15}
    fs=[int(x) for x in opt.get("fs","0,1,2,3,5,6").split(",")]
    rest=list(range(2+npre,8))
    for n,b in enumerate(rest): dma_at[fs[n]]=b
    issued=lambda u: 2+npre+len([x for x in fs[:len(rest)] if x<=u])
    lastsync=int(opt.get("ls",52))
    sync_before={2:2*(issued(1)-1-nb1),12:0,28:0,40:0,lastsync:0}
    if nb1<3: sync_before[4*nb1]=2*(issued(4*nb1-1)-4)
    xbar=4*63
    lv={}
    fr=[float(x) for x in opt.get("lv","0.7,0.9,0.97").split(",")]
    bars=[0]+[4*(x-1)+3 for x in sorted(sync_before)]+[xbar]
    for si,(a,b) in enumerate(zip(bars[:-1],bars[1:])):
        lv[a]=3
        for n,f in enumerate([float(x) for x in opt[f"lv{si}"].split(",")] if f"lv{si}" in opt else fr):
            p=a+int(round((b-a)*f))
            if a<p<b: lv[p]=2-n
    lv[xbar]=0
    if opt.get("hp"):
        for p in [p for p in lv if p<bars[1]]: del lv[p]
        for p,x in eval(opt["hp"]): lv[p]=x
    plan={}
    def put(u,k,f): plan.setdefault((u,k),[]).append(f)
    for r in range(4): put(0,r//2,lambda r=r: kread(g,3,r))
    for i in range(4): put(0,1+i//2,lambda i=i: vread(g,1,i))
    for i in range(4): put(1,0 if i<2 else 2,lambda i=i: vread(g,2,i))
    for i in range(4): put(2,(0 if i<2 else 1),lambda i=i: vread(g,3,i))
    for r in range(4): put(2,2+r//2,lambda r=r: kread(g,6,r))
    for u in range(8,62,2):
        for r in range(4): put(u-4,r,lambda u=u,r=r: kread(g,u,r))
    for u in range(4,62,2):
        for i in range(4): put(u-1,i,lambda u=u,i=i: vread(g,u,i))
    for u in (61,62,63):
        for r in range(4): put(u-3,r//2,lambda u=u,r=r: kread(g,u,r))
        for i in range(4): put(u-1,(2+i//2) if u<63 else i//2,lambda u=u,i=i: vread(g,u,i))
    wpos=eval(opt.get("wpos","[(60,1),(61,0),(61,1),(61,3)]"))
    for k in range(4): put(*wpos[k],lambda k=k: g.ldswrite("ds_write_b128",vXW,vO+4*k,4,1024*k))
    for u in range(NU):
        g.comment(f"slot {u} tile {tile(u)}")
        if opt.get("fine"):
            f0,fst=[int(x) for x in (opt["fine"] if opt["fine"]!=1 else "0,4").split(",")]
            if u>=f0 and (u-f0)%fst==0 and (u-f0)//fst<16:
                k=(u-f0)//fst
                g.salu(f"s_memtime s[{60+2*k}:{61+2*k}]")
        E=[S(u)+k for k in range(16)]
        def ex(a,b):
            for k in range(a,b): g.exp(E[k])
        def setlv(k):
            if 4*u+k in lv: g.salu(f"s_setprio {lv[4*u+k]}")
        def after(k,dolv=True):
            if opt.get("qfine") and u<4: g.salu(f"s_memtime s[{60+2*(4*u+k)}:{61+2*(4*u+k)}]")
            if dolv: setlv(k)
            if u in dma_at and k in(0,2): dma(g,dma_at[u],k//2)
            for f in plan.get((u,k),[]): f()
        def pre(u2,which):
            if u2>=NU: return
            if which=="K": g.need(R(KB(u2),8)+R(QB(u2),8))
            elif which=="Vl": g.need(R(VB(u2),4))
            elif which=="Vh": g.need(R(VB(u2)+4,4))
            else: g.need(R(VB(u2),8))
        if u==0:
            ex(0,2); M2(1); pre(2,"K"); after(0)
            ex(2,6); M1(2); after(1)
            ex(6,10); M2(2); pre(0,"V"); after(2)
            ex(10,14); P1(0); pre(3,"K"); after(3)
            ex(14,16)
        elif u==2:
            ex(0,2); P2(1); after(0)
            ex(2,6); pre(4,"K"); M1(4); after(1)
            ex(6,10); M2(4); pre(2,"Vl"); after(2)
            ex(10,13); P1(2); after(3)
            ex(13,16)
        elif u+2<NU:
            inst = u<4 or u>=60
            M1(u+2); after(0)
            ex(0,4); M2(u+2)
            if inst or u==4: pre(u-1,"Vh")
            after(1)
            ex(4,8); P2(u-1)
            pre(u,"Vl" if inst else "V"); after(2)
            ex(8,12); P1(u)
            if u!=1: pre(u+3,"K")
            after(3,(u+1) not in sync_before)
            if (u+1) in sync_before:
                if u==1: g.need(["W"])
                g.wait(vm=sync_before[u+1]); g.barrier(); setlv(3)
                if u==1:
                    kread(g,4,0); kread(g,4,1)
                    g.ldsread("ds_read_b128",vQ,4,vXR,0)
                    kread(g,4,2); kread(g,4,3)
                    g.ldsread("ds_read_b128",vQ+4,4,vXR,1024)
            ex(12,16)
        elif u==62:
            ex(0,2); P2(61); after(0)
            ex(2,6); after(1)
            ex(6,10); P1(62); after(2); setlv(3)
            ex(10,16)
        elif u==63:
            ex(0,2); P2(62)
            g.wait(lgkm=0); g.q=[]
            g.barrier(); setlv(0)
            for k in range(4): g.ldsread("ds_read_b128",vX+4*k,4,vXR,1024*k)
            ex(2,10); P1(63)
            ex(10,16)
    g.stamp(5)
    if opt.get("fine") or opt.get("qfine"): g.salu(f"s_memtime s[92:93]")
    g.need(R(vX,16))
    g.nop(0)
    P2(NU-1)
    A=vO+16
    g.salu("s_setprio 1")
    g.nop(10)
    def pk(op,d,a,b): g.v(f"{op} {vr(d,2)}, {vr(a,2)}, {vr(b,2)}",R(a,2)+R(b,2),R(d,2))
    pk("v_pk_add_f32",A+12,A+12,vX+12)
    pk("v_pk_add_f32",A+0,A+0,vX+0)
    g.v(f"v_mov_b32 v{T+2}, v{A+12}",R(A+12),R(T+2))
    g.v(f"v_mov_b32 v{T+3}, v{A+12}",R(A+12),R(T+3))
    pk("v_pk_add_f32",A+2,A+2,vX+2)
    pk("v_pk_add_f32",A+4,A+4,vX+4)
    g.v(f"v_permlane32_swap_b32 v{T+2}, v{T+3}",R(T+2,2),R(T+2,2))
    pk("v_pk_add_f32",A+6,A+6,vX+6)
    g.label("L_final")
    g.valu(f"v_rcp_f32 v{T+4}, v{T+3}",R(T+3),R(T+4),trans=True)
    for k in (8,10,14): pk("v_pk_add_f32",A+k,A+k,vX+k)
    def pkm(k): g.v(f"v_pk_mul_f32 {vr(vS+16+k,2)}, {vr(A+k,2)}, {vr(T+4,2)} op_sel_hi:[1,0]",R(A+k,2)+R(T+4),R(vS+16+k,2))
    def cvt(k): g.v(f"v_cvt_pk_bf16_f32 v{vS+k}, v{vS+16+2*k}, v{vS+17+2*k}",R(vS+16+2*k,2),R(vS+k))
    pkm(0); pkm(2); cvt(0); cvt(1)
    pkm(4); pkm(6); g.dswrite("ds_write_b64",vOUT,vS,2,0); cvt(2); cvt(3)
    pkm(8); pkm(10); g.dswrite("ds_write_b64",vOUT,vS+2,2,8); cvt(4); cvt(5)
    pkm(12); pkm(14); g.dswrite("ds_write_b64",vOUT,vS+4,2,16); cvt(6); cvt(7)
    g.salu("s_mov_b32 exec_hi, 0")
    g.dswrite("ds_write_b64",vOUT,vS+6,2,24)
    g.salu("s_mov_b32 exec_hi, -1")
    g.dsread("ds_read_b128",vS+8,4,vST,0)
    g.dsread("ds_read_b128",vS+12,4,vST,1024)
    g.salu("s_setprio 0")
    pk("v_pk_add_f32",T+6,A,A+2)
    pk("v_pk_add_f32",T+10,A+4,A+6)
    pk("v_pk_add_f32",T+12,A+8,A+10)
    pk("v_pk_add_f32",T+14,A+12,A+14)
    pk("v_pk_add_f32",T+6,T+6,T+10)
    pk("v_pk_add_f32",T+12,T+12,T+14)
    pk("v_pk_add_f32",T+6,T+6,T+12)
    g.v(f"v_add_f32 v{T+6}, v{T+6}, v{T+7}",R(T+6,2),R(T+6))
    g.v(f"v_fma_f32 v{T+6}, v{T+6}, 0, v{T+3}",R(T+6)+R(T+3),R(T+6))
    g.v(f"v_cmp_le_f32 vcc, 1.0, v{T+6}",R(T+6),[])
    g.v(f"v_cmp_ge_f32 s[42:43], s44, v{T+6}",R(T+6),[])
    sfx=opt.get("stflag","sc1").replace("+"," ")
    g.wait(lgkm=1)
    g.raw(f"buffer_store_dwordx4 {vr(vS+8,4)}, v{vD}, s[20:23], s38 offen {sfx}","vmem",R(vS+8,4)+R(vD),[],load=False)
    g.salu("s_mov_b32 exec_hi, 0xffff")
    g.wait(lgkm=0)
    g.raw(f"buffer_store_dwordx4 {vr(vS+12,4)}, v{vD}, s[20:23], s38 offen offset:1024 {sfx}","vmem",R(vS+12,4)+R(vD),[],load=False)
    g.salu("s_mov_b32 exec_hi, -1")
    g.salu("s_and_b64 vcc, vcc, s[42:43]")
    g.salu("s_or_b64 vcc, vcc, s[46:47]")
    g.salu("s_cmp_eq_u64 vcc, -1")
    g.salu("s_cbranch_scc0 L_slow")
    if opt.get("stamps") or opt.get("fine") or opt.get("qfine"):
        g.stamp(6); g.wait(vm=0); g.stamp(7)
        g.salu("s_load_dwordx2 s[50:51], s[0:1], 0x28")
        g.wait(lgkm=0)
        g.valu("v_mov_b32 v1, 0",[],["v1"])
        if opt.get("fine") or opt.get("qfine"):
            for k in range(17): g.raw(f"v_writelane_b32 v1, s{60+2*k}, {k}","valu")
        else:
            for k in range(8): g.raw(f"v_writelane_b32 v1, s{60+2*k}, {k}","valu")
            g.salu("s_getreg_b32 s52, hwreg(HW_REG_HW_ID)")
            g.raw(f"v_writelane_b32 v1, s52, 8","valu")
            g.salu("s_getreg_b32 s52, hwreg(HW_REG_XCC_ID)")
            g.raw(f"v_writelane_b32 v1, s52, 9","valu")
        g.salu("s_lshl_b32 s52, s2, 3")
        g.salu("s_add_u32 s52, s52, s28")
        g.salu("s_lshl_b32 s52, s52, 8")
        g.valu(f"v_lshl_add_u32 v0, v{vLANE}, 2, s52",R(vLANE),["v0"])
        g.raw("global_store_dword v0, v1, s[50:51]","vmem")
    if opt.get("enc"):
        a,b,mul=[int(x) for x in opt["enc"].split(",")]
        g.stamp(6); g.wait(vm=0); g.stamp(7)
        g.wait(lgkm=0)
        g.salu(f"s_sub_u32 s52, s{60+2*b}, s{60+2*a}")
        g.salu(f"s_mul_i32 s52, s52, {mul}")
        g.label("L_spin")
        g.salu(("s_memrealtime" if opt.get("rt") else "s_memtime")+" s[54:55]")
        g.wait(lgkm=0)
        g.salu("s_sub_u32 s53, s54, s74")
        g.salu("s_cmp_lt_u32 s53, s52")
        g.salu("s_cbranch_scc1 L_spin")
    g.label("L_end")
    g.raw("s_endpgm","salu")
    errs=g.check()
    return g, slow_path(opt), errs

def slow_path(opt):
    g=G({}); T=vT
    A=vO+16; Qr=vQ+8; KFr=vKF; VFr=vV; Sr=vS; m=T+8; VA=vVA+1; MK=vVA+2
    g.label("L_slow")
    g.wait(vm=0,lgkm=0)
    g.salu("s_mov_b64 s[46:47], -1")
    g.salu("s_add_u32 s16, s6, s29"); g.salu("s_addc_u32 s17, s7, 0")
    g.salu("s_add_u32 s24, s8, s29"); g.salu("s_addc_u32 s25, s9, 0")
    g.salu(f"s_mov_b32 s26, {HEADB}"); g.salu("s_mov_b32 s27, 0x20000")
    g.salu("s_lshl_b32 s49, s28, 12")
    g.salu(f"s_add_u32 s49, s49, {VRING}")
    g.v(f"v_add_u32 v{vK}, s49, v{vQO}",R(vQO),R(vK))
    g.salu("s_mul_i32 s41, s36, 3584")
    g.salu(f"s_add_u32 s41, s41, {VRING-2048}")
    g.salu("s_sub_u32 s41, s49, s41")
    g.v(f"v_add_u32 v{VA}, s41, v{vVA}",R(vVA),R(VA))
    g.v(f"v_and_b32 v{T+10}, 0x13, v{vLANE}",R(vLANE),R(T+10))
    g.v(f"v_cmp_eq_u32 vcc, 0x13, v{T+10}",R(T+10),[])
    g.nop(1)
    g.v(f"v_cndmask_b32 v{VA}, v{VA}, v{vVA}, vcc",R(VA)+R(vVA),R(VA))
    g.v(f"v_cmp_gt_u32 vcc, 32, v{vLANE}",R(vLANE),[])
    g.nop(1)
    g.v(f"v_cndmask_b32 v{MK}, 0, -1, vcc",[],R(MK))
    for k in range(16): g.v(f"v_mov_b32 v{A+k}, 0",[],R(A+k))
    for k in range(16): g.v(f"v_mov_b32 v{vX+k}, 0",[],R(vX+k))
    g.v(f"v_mov_b32 v{m}, 0xff7fffff",[],R(m))
    g.salu("s_mov_b32 s30, 0")
    g.label("L_slow_loop")
    g.salu("s_mov_b32 m0, s49")
    g.nop(0)
    for k in range(2): g.raw(f"buffer_load_dwordx4 v{vD}, s[16:19], s30 offen offset:{1024*k} lds","vmem",R(vD),[],load=False)
    g.salu("s_add_u32 m0, s49, 2048")
    g.nop(0)
    for k in range(2): g.raw(f"buffer_load_dwordx4 v{vD}, s[24:27], s30 offen offset:{1024*k} lds","vmem",R(vD),[],load=False)
    g.wait(vm=0)
    for rho in range(4): g.dsread("ds_read_b64",KFr+2*rho,2,vK,8*rho)
    for i in range(4): g.dsread("ds_read_b64_tr_b16",VFr+2*i,2,VA,[0,224,896,1120][i])
    g.wait(lgkm=0)
    for k in range(2): g.v(f"v_and_b32 v{KFr+k}, v{KFr+k}, v{MK}",R(KFr+k)+R(MK),R(KFr+k))
    g.nop(1)
    g.mfma(Sr,KFr,Qr,None); g.mfma(Sr,KFr+4,Qr+4,Sr)
    g.nop(11)
    t=T+12
    g.v(f"v_max3_f32 v{t}, v{Sr}, v{Sr+1}, v{m}",R(Sr,2)+R(m),R(t))
    for k in range(1,8): g.v(f"v_max3_f32 v{t}, v{Sr+2*k}, v{Sr+2*k+1}, v{t}",R(Sr+2*k,2)+R(t),R(t))
    g.v(f"v_mov_b32 v{t+1}, v{t}",R(t),R(t+1))
    g.nop(1)
    g.v(f"v_permlane32_swap_b32 v{t}, v{t+1}",R(t,2),R(t,2))
    g.nop(1)
    g.v(f"v_max_f32 v{t}, v{t}, v{t+1}",R(t,2),R(t))
    g.v(f"v_sub_f32 v{t+1}, v{m}, v{t}",R(m)+R(t),R(t+1))
    g.valu(f"v_exp_f32 v{t+1}, v{t+1}",R(t+1),R(t+1),trans=True)
    g.v(f"v_mov_b32 v{m}, v{t}",R(t),R(m))
    for k in range(16): g.v(f"v_sub_f32 v{Sr+k}, v{Sr+k}, v{t}",R(Sr+k)+R(t),R(Sr+k))
    for k in range(16): g.exp(Sr+k)
    for k in range(16): g.v(f"v_mul_f32 v{A+k}, v{A+k}, v{t+1}",R(A+k)+R(t+1),R(A+k))
    g.nop(1)
    g.smfmac(A,VFr,Sr,vIDX); g.smfmac(A,VFr+4,Sr+8,vIDX)
    g.nop(11)
    g.salu(f"s_add_u32 s30, s30, {TILE}")
    g.salu(f"s_cmp_lt_u32 s30, {HEADB}")
    g.salu("s_cbranch_scc1 L_slow_loop")
    g.v(f"v_mov_b32 v{T+2}, v{A+12}",R(A+12),R(T+2))
    g.v(f"v_mov_b32 v{T+3}, v{A+12}",R(A+12),R(T+3))
    g.nop(1)
    g.v(f"v_permlane32_swap_b32 v{T+2}, v{T+3}",R(T+2,2),R(T+2,2))
    g.nop(1)
    g.salu("s_branch L_final")
    e=g.check()
    if e: print("slow path errs:",e,file=sys.stderr)
    return g

HDR=f"""; Fused attention, B*H=32 heads, S=2048, Dh=28 (bf16).
; @launch grid=(256,1,1) block=(512,1,1) lds={LDS}
.amdgcn_target "amdgcn-amd-amdhsa--gfx950"
.text
.globl {NAME}_kernel
.p2align 8
.type {NAME}_kernel,@function
{NAME}_kernel:
"""
FTR=f""".section .rodata,"a"
.p2align 6
.amdhsa_kernel {NAME}_kernel
  .amdhsa_next_free_vgpr {NV}
  .amdhsa_next_free_sgpr 96
  .amdhsa_accum_offset {NV}
  .amdhsa_group_segment_fixed_size 0
  .amdhsa_kernarg_size 48
  .amdhsa_user_sgpr_count 2
  .amdhsa_user_sgpr_kernarg_segment_ptr 1
  .amdhsa_system_sgpr_workgroup_id_x 1
.end_amdhsa_kernel
"""
if __name__=="__main__":
    opt={}
    out=sys.argv[1]
    for a in sys.argv[2:]:
        k,_,v=a.partition("="); opt[k]=v or 1
    g,sl,errs=build(opt)
    for e in errs: print("HAZARD:",e,file=sys.stderr)
    open(out,"w").write(HDR+g.text()+sl.text()+FTR)
```

```python
import sys, math, struct
from asmlib import *

NAME="standalone__fused_io_aware_attn__prompt"
HEADB=114688; BLK=7168; TILE=1792
KRING=0; NSLOT=8; VRING=NSLOT*BLK; ONES=2*NSLOT*BLK; XCH=ONES+4096; LDS=XCH+32768
def f2u(x): return struct.unpack("<I",struct.pack("<f",x))[0]
CSC=math.log2(math.e)/math.sqrt(28.0)

vXR=0; vXW=1; vLANE=2; vK=3; vD=4; vQO=5
vVA=6
vOUT=14; vIDX=15
vV=16; vQ=32; vKF=48; vS=64; vO=128
vX=160
vT=176
NV=192
NU=64

class G(Prog):
    def __init__(s, opt):
        super().__init__(); s.opt=opt; s.q=[]
    def ldsread(s, op, d, n, addr, off):
        s.dsread(op,d,n,addr,off); s.q.append(set(R(d,n)))
    def ldswrite(s, op, addr, d, n, off):
        s.dswrite(op,addr,d,n,off); s.q.append(set(["W"]))
    def need(s, regs):
        regs=set(regs); last=-1
        for k,x in enumerate(s.q):
            if x&regs: last=k
        if last>=0:
            n=len(s.q)-1-last
            s.wait(lgkm=n); s.q=s.q[last+1:]
    def stamp(s, k):
        if s.opt.get("stamps") or s.opt.get("enc"):
            s.raw(f"{'s_memrealtime' if s.opt.get('rt') else 's_memtime'} s[{60+2*k}:{61+2*k}]","salu")
    def barrier(s): s.raw("s_barrier","salu")
    def v(s, text, rd, wr): s.valu(text, rd, wr)

def S(u): return vS+16*(u&3)
def KF(j): return vKF+8*(j&1)
def VF(j): return vV+8*(j&1)
def kread(g,j,rho):
    n=j>>1; kt=j&1
    g.ldsread("ds_read_b64", KF(j)+2*rho, 2, vK, KRING+(n%NSLOT)*BLK+kt*TILE+8*rho)
def vread(g,j,i):
    n=j>>1; kt=j&1
    g.ldsread("ds_read_b64_tr_b16", VF(j)+2*i, 2, vVA+(n%NSLOT), kt*TILE+[0,224,896,1120][i])
def dma(g,b,k):
    if k==0:
        g.salu(f"s_add_u32 m0, s31, {(b%NSLOT)*BLK}")
        g.salu(f"s_add_u32 s30, s34, {b*BLK}")
    fl=g.opt.get("dflag","").replace("+"," ") if b<int(g.opt.get("dfn",16)) else ""
    g.raw(f"buffer_load_dwordx4 v{vD}, s[16:19], s30 offen offset:{1024*k} {fl} lds","vmem",R(vD),[],load=False)

def build(opt):
    g=G(opt); T=vT
    m=int(opt.get("tail",4))
    t0=NU-2*m
    seq=[(u>>1,u&1) for u in range(NU)]
    seq[0:4]=[(0,1),(1,1),(0,0),(1,0)]
    seq[t0:]=[(32-m+i,0) for i in range(m)]+[(32-m+i,1) for i in range(m)]
    def M1(u): j,t=seq[u]; g.need(R(KF(j),4)+R(vQ+8*t,4)); g.mfma(S(u), KF(j), vQ+8*t, None)
    def M2(u): j,t=seq[u]; g.need(R(KF(j)+4,4)+R(vQ+8*t+4,4)); g.mfma(S(u), KF(j)+4, vQ+8*t+4, S(u))
    def P1(u): j,t=seq[u]; g.need(R(VF(j),4)); g.smfmac(vO+16*t, VF(j), S(u), vIDX)
    def P2(u): j,t=seq[u]; g.need(R(VF(j)+4,4)); g.smfmac(vO+16*t, VF(j)+4, S(u)+8, vIDX)
    g.salu("s_cmp_ge_u32 s2, 0x100")
    g.salu("s_cbranch_scc1 L_end")
    g.salu("s_load_dwordx8 s[4:11], s[0:1], 0x0")
    g.salu("s_setprio 3")
    g.stamp(0)
    if opt.get("cpf"):
        g.salu("s_getpc_b64 s[50:51]")
        g.label("L_pc")
        c=str(opt["cpf"])
        if c=="1":
            g.v(f"v_lshlrev_b32 v{T+15}, 7, v0",["v0"],R(T+15))
        elif c=="2":
            g.salu("s_lshr_b32 s52, s2, 3")
            g.salu("s_lshl_b32 s52, s52, 9")
            g.v(f"v_and_b32 v{T+15}, 0x1c0, v0",["v0"],R(T+15))
            g.v(f"v_add_u32 v{T+15}, s52, v{T+15}",R(T+15),R(T+15))
        elif c=="3":
            g.v(f"v_and_b32 v{T+14}, 15, v0",["v0"],R(T+14))
            g.v(f"v_lshrrev_b32 v{T+15}, 6, v0",["v0"],R(T+15))
            g.v(f"v_lshl_add_u32 v{T+15}, v{T+14}, 3, v{T+15}",R(T+14,2),R(T+15))
            g.v(f"v_lshlrev_b32 v{T+15}, 7, v{T+15}",R(T+15),R(T+15))
        elif c=="4":
            g.salu("s_bfe_u32 s52, s2, 0x20003")
            g.salu("s_lshl_b32 s52, s52, 7")
            g.v(f"v_and_b32 v{T+14}, 3, v0",["v0"],R(T+14))
            g.v(f"v_lshrrev_b32 v{T+15}, 6, v0",["v0"],R(T+15))
            g.v(f"v_lshl_add_u32 v{T+15}, v{T+14}, 3, v{T+15}",R(T+14,2),R(T+15))
            g.v(f"v_lshl_add_u32 v{T+15}, v{T+15}, 9, s52",R(T+15),R(T+15))
        g.v(f"v_min_u32 v{T+15}, L_end-L_pc, v{T+15}",R(T+15),R(T+15))
        g.raw(f"global_load_dword v{T+15}, v{T+15}, s[50:51]","vmem",R(T+15),R(T+15),load=True)
    g.v("v_lshrrev_b32 v1, 6, v0",["v0"],["v1"])
    g.v(f"v_and_b32 v{vLANE}, 63, v0",["v0"],R(vLANE))
    g.v("v_readfirstlane_b32 s28, v1",["v1"],[])
    g.salu("s_and_b32 s3, s2, 7")
    g.salu("s_lshr_b32 s29, s2, 6")
    g.salu("s_lshl_b32 s29, s29, 3")
    g.salu("s_add_u32 s3, s3, s29")
    g.salu(f"s_mul_i32 s29, s3, {HEADB}")
    g.salu("s_bfe_u32 s33, s2, 0x30003")
    g.salu("s_mul_i32 s33, s33, 14336")
    g.salu("s_add_u32 s33, s33, s29")
    g.v(f"v_and_b32 v{T}, 31, v{vLANE}",R(vLANE),R(T))
    g.v(f"v_lshrrev_b32 v{T+1}, 5, v{vLANE}",R(vLANE),R(T+1))
    g.v(f"v_mul_u32_u24 v{T}, 56, v{T}",R(T),R(T))
    g.v(f"v_mad_u32_u24 v{vQO}, v{T+1}, 24, v{T}",R(T,2),R(vQO))
    g.v(f"v_lshlrev_b32 v{vD}, 4, v{vLANE}",R(vLANE),R(vD))
    g.salu("s_and_b32 s35, s28, 3")
    g.salu("s_lshr_b32 s36, s28, 2")
    g.salu("s_mul_i32 s35, s35, 3584")
    g.salu(f"s_mul_i32 s37, s36, {TILE}")
    g.salu("s_add_u32 s38, s35, s37")
    g.salu("s_and_b32 s39, s28, 1")
    g.salu("s_lshl_b32 s34, s36, 1")
    g.salu("s_add_u32 s34, s34, s39")
    g.salu("s_lshl_b32 s34, s34, 11")
    g.salu("s_min_u32 s34, s34, 5120")
    g.salu("s_mov_b32 s14, 14336")
    g.salu("s_mov_b32 s15, 0x20000")
    g.salu(f"s_mov_b32 s18, {HEADB}")
    g.salu("s_mov_b32 s19, 0x20000")
    g.salu("s_bitcmp1_b32 s28, 1")
    g.salu(f"s_cselect_b32 s31, {VRING}, {KRING}")
    g.salu("s_add_u32 s31, s31, s34")
    g.salu("s_mov_b32 m0, s31")
    g.v(f"v_mov_b32 v{T+2}, 0x3f80",[],R(T+2))
    g.v(f"v_mov_b32 v{T+3}, 0",[],R(T+3))
    g.v(f"v_lshlrev_b32 v{T+4}, 3, v0",["v0"],R(T+4))
    g.v(f"v_add_u32 v{T+4}, {ONES}, v{T+4}",R(T+4),R(T+4))
    g.wait(lgkm=0)
    g.stamp(1)
    g.salu("s_bitcmp1_b32 s28, 1")
    g.salu("s_cselect_b32 s16, s8, s6")
    g.salu("s_cselect_b32 s17, s9, s7")
    g.salu("s_add_u32 s16, s16, s29")
    g.salu("s_addc_u32 s17, s17, 0")
    g.raw(f"buffer_load_dwordx4 v{vD}, s[16:19], s34 offen lds","vmem",R(vD),[],load=False)
    g.raw(f"buffer_load_dwordx4 v{vD}, s[16:19], s34 offen offset:1024 lds","vmem",R(vD),[],load=False)
    g.salu("s_setprio 2")
    g.salu("s_add_u32 s12, s4, s33")
    g.salu("s_addc_u32 s13, s5, 0")
    for k in range(2):
        g.raw(f"buffer_load_dwordx4 {vr(vQ+8+4*k,4)}, v{vQO}, s[12:15], s38 offen offset:{16*k} {opt.get('qflag','')}","vmem",R(vQO),R(vQ+8+4*k,4),load=True)
    g.salu("s_setprio 1")
    dma(g,1,0); dma(g,1,1)
    g.salu("s_setprio 0")
    g.stamp(2)
    g.ldswrite("ds_write_b64",T+4,T+2,2,0)
    g.salu("s_add_u32 s20, s10, s33")
    g.salu("s_addc_u32 s21, s11, 0")
    g.salu("s_mov_b32 s22, 14336")
    g.salu("s_mov_b32 s23, 0x20000")
    g.salu("s_mov_b32 s44, 0x5f800000")
    g.salu("s_mov_b64 s[46:47], 0")
    g.v(f"v_mov_b32 v{T+10}, 0x{f2u(CSC):08x}",[],R(T+10))
    g.v(f"v_mov_b32 v{T+11}, 0x{f2u(CSC):08x}",[],R(T+11))
    g.v(f"v_cmp_eq_u32 vcc, 0, v{T+1}",R(T+1),[])
    g.v(f"v_mov_b32 v{T+14}, 0xffff0000",[],R(T+14))
    for k in range(4): g.v(f"v_mov_b32 v{vX+k}, 0",[],R(vX+k))
    g.v(f"v_cndmask_b32 v{T+12}, 0, v{T+10}, vcc",R(T+10),R(T+12))
    g.v(f"v_cndmask_b32 v{T+13}, 0, v{T+10}, vcc",R(T+10),R(T+13))
    g.mfma(vO,vX,vX,None)
    g.mfma(vO+16,vX,vX,None)
    g.salu("s_mul_i32 s41, s36, 3584")
    g.v(f"v_add_u32 v{vK}, s41, v{vQO}",R(vQO),R(vK))
    g.salu("s_lshl_b32 s48, s28, 11")
    g.v(f"v_lshl_add_u32 v{vOUT}, v{T+1}, 5, v{T}",R(T,2),R(vOUT))
    g.v(f"v_add_u32 v{vOUT}, s48, v{vOUT}",R(vOUT),R(vOUT))
    g.salu("s_lshl_b32 s42, s28, 12")
    g.salu(f"s_add_u32 s42, s42, {XCH}")
    g.v(f"v_add_u32 v{vXW}, s42, v{vD}",R(vD),R(vXW))
    g.salu("s_xor_b32 s42, s28, 4")
    g.salu("s_lshl_b32 s42, s42, 12")
    g.salu(f"s_add_u32 s42, s42, {XCH}")
    g.v(f"v_add_u32 v{vXR}, s42, v{vD}",R(vD),R(vXR))
    g.salu(f"s_add_u32 s41, s41, {VRING}")
    g.v(f"v_bfe_u32 v{T+5}, v{vLANE}, 2, 2",R(vLANE),R(T+5))
    g.v(f"v_lshl_add_u32 v{T+5}, v{T+1}, 3, v{T+5}",R(T+1)+R(T+5),R(T+5))
    g.v(f"v_mul_u32_u24 v{T+5}, 56, v{T+5}",R(T+5),R(T+5))
    g.v(f"v_and_b32 v{T+6}, 16, v{vLANE}",R(vLANE),R(T+6))
    g.v(f"v_add3_u32 v{T+5}, v{T+5}, v{T+6}, s41",R(T+5,2),R(T+5))
    g.v(f"v_and_b32 v{T+6}, 2, v{vLANE}",R(vLANE),R(T+6))
    g.v(f"v_lshl_add_u32 v{T+5}, v{T+6}, 2, v{T+5}",R(T+5,2),R(T+5))
    g.v(f"v_and_b32 v{T+6}, 1, v{vLANE}",R(vLANE),R(T+6))
    g.v(f"v_lshl_add_u32 v{T+5}, v{T+6}, 5, v{T+5}",R(T+5,2),R(T+5))
    g.v(f"v_and_b32 v{T+6}, 0x13, v{vLANE}",R(vLANE),R(T+6))
    g.v(f"v_cmp_eq_u32 vcc, 0x13, v{T+6}",R(T+6),[])
    g.v(f"v_lshlrev_b32 v{T+7}, 6, v{T+1}",R(T+1),R(T+7))
    g.v(f"v_sub_u32 v{T+7}, {ONES+224}, v{T+7}",R(T+7),R(T+7))
    g.v(f"v_mov_b32 v{T+8}, {BLK}",[],R(T+8))
    g.v(f"v_cndmask_b32 v{vVA}, v{T+5}, v{T+7}, vcc",R(T+5)+R(T+7),R(vVA))
    g.v(f"v_cndmask_b32 v{T+8}, v{T+8}, 0, vcc",R(T+8),R(T+8))
    for k in range(1,NSLOT):
        g.v(f"v_add_u32 v{vVA+k}, v{vVA+k-1}, v{T+8}",R(vVA+k-1)+R(T+8),R(vVA+k))
    g.v(f"v_mov_b32 v{vIDX}, 0xdddddddd",[],R(vIDX))
    g.wait(vm=4,lgkm=0); g.q=[]
    g.barrier()
    if opt.get("hp"): g.salu("s_setprio 3")
    g.stamp(3)
    for rho in range(4): kread(g,0,rho)
    for rho in range(4): kread(g,1,rho)
    for i in range(4): vread(g,0,i)
    for k in range(8):
        if k%4==0: g.wait(vm=3-k//4)
        r=vQ+8+k; t=vX+2*k
        cc=T+12 if k<2 else T+10
        g.v(f"v_lshlrev_b32 v{t}, 16, v{r}",R(r),R(t))
        g.v(f"v_and_b32 v{t+1}, v{T+14}, v{r}",R(r)+R(T+14),R(t+1))
        g.v(f"v_pk_mul_f32 {vr(t,2)}, {vr(t,2)}, {vr(cc,2)}",R(t,2)+R(cc,2),R(t,2))
        g.v(f"v_cvt_pk_bf16_f32 v{r}, v{t}, v{t+1}",R(t,2),R(r))
        if k==4: M1(0)
    g.stamp(4)
    g.ldswrite("ds_write_b128",vXW,vQ+8,4,0)
    g.nop(0)
    M2(0)
    g.ldswrite("ds_write_b128",vXW,vQ+12,4,1024)
    M1(1)
    dma(g,2,0); dma(g,2,1)
    g.nop(5)
    dma_at={12:8,14:9,16:10,28:11,29:12,30:13,31:14,40:15}
    fs=[int(x) for x in opt.get("fs","1,2,3,5,6").split(",")]
    for n,b in enumerate(range(3,8)): dma_at[fs[n]]=b
    issued=lambda u: 3+len([x for x in fs if x<=u])
    lastsync=min(56,t0+2-3) if m>2 else 56
    lastsync=int(opt.get("ls",52))
    sync_before={4:2*(issued(3)-4),12:0,28:0,40:0,lastsync:0}
    xbar=4*63
    lv={}
    fr=[float(x) for x in opt.get("lv","0.75,0.92,0.975").split(",")]
    bars=[0,1]+[4*(x-1)+3 for x in sorted(sync_before)]+[xbar]
    for si,(a,b) in enumerate(zip(bars[:-1],bars[1:])):
        lv[a]=3
        for n,f in enumerate([float(x) for x in opt[f"lv{si}"].split(",")] if f"lv{si}" in opt else fr):
            p=a+int(round((b-a)*f))
            if a<p<b: lv[p]=2-n
    lv[xbar]=0
    if opt.get("hp"):
        for p in [p for p in lv if p<bars[1]]: del lv[p]
        for p,x in eval(opt["hp"]): lv[p]=x
    plan={}
    def put(u,k,f): plan.setdefault((u,k),[]).append(f)
    first={}
    for u in range(NU): first.setdefault(seq[u][0],u)
    for j in range(2,32-m+1):
        u=2*(j-2)
        for r in range(4):
            if j==2: put(1,2,lambda j=j,r=r: kread(g,j,r))
            elif j==3: put(2,1+r//2,lambda j=j,r=r: kread(g,j,r))
            else: put(u,r,lambda j=j,r=r: kread(g,j,r))
    for j in range(1,32-m):
        u=2*(j-1)+1
        for i in range(4):
            if j==1: put(0,i//2,lambda j=j,i=i: vread(g,j,i))
            elif j==2: put(3,1+i//2 if i<2 else 2,lambda j=j,i=i: vread(g,j,i))
            else: put(u,i,lambda j=j,i=i: vread(g,j,i))
    for u in range(t0+1,NU):
        for r in range(4): put(u-3,r//2,lambda j=seq[u][0],r=r: kread(g,j,r))
    for u in range(t0,NU):
        for i in range(4): put(u-1,(2+i//2) if u-1<62 else i//2,lambda j=seq[u][0],i=i: vread(g,j,i))
    wslot=t0+m+1
    wpos=[(wslot,1),(wslot,2),(wslot,3),(wslot+1,0)] if wslot<62 else [(62,1),(62,1),(62,2),(62,2)]
    for k in range(4): put(*wpos[k],lambda k=k: g.ldswrite("ds_write_b128",vXW,vO+4*k,4,1024*k))
    for u in range(NU):
        g.comment(f"slot {u} tile {seq[u]}")
        if opt.get("fine"):
            f0,fst=[int(x) for x in (opt["fine"] if opt["fine"]!=1 else "0,4").split(",")]
            if u>=f0 and (u-f0)%fst==0 and (u-f0)//fst<16:
                k=(u-f0)//fst
                g.salu(f"s_memtime s[{60+2*k}:{61+2*k}]")
        E=[S(u)+k for k in range(16)]
        def ex(a,b):
            for k in range(a,b): g.exp(E[k])
        def setlv(k):
            if (u,k)==(0,1): return
            if (u,k)==(0,3): k=1
            if 4*u+k in lv: g.salu(f"s_setprio {lv[4*u+k]}")
        def after(k,dolv=True):
            if opt.get("qfine") and u<4: g.salu(f"s_memtime s[{60+2*(4*u+k)}:{61+2*(4*u+k)}]")
            if dolv: setlv(k)
            if u in dma_at and k in(0,2): dma(g,dma_at[u],k//2)
            for f in plan.get((u,k),[]): f()
        def pre(u2,which):
            if u2>=NU: return
            j,t=seq[u2]
            if which=="K": g.need(R(KF(j),8)+R(vQ+8*t,8))
            elif which=="Vl": g.need(R(VF(j),4))
            else: g.need(R(VF(j),8))
        if u==0:
            ex(0,4); M2(1); after(0)
            ex(4,10); pre(0,"V"); P1(0); after(1)
            g.wait(vm=2); g.need(["W"]); g.barrier(); setlv(3)
            for k in range(2): g.ldsread("ds_read_b128",vQ+4*k,4,vXR,1024*k)
            ex(10,16)
        elif u==1:
            ex(0,2); P2(0); pre(2,"K"); after(0)
            ex(2,4); M1(2); after(1)
            ex(4,8); M2(2); after(2)
            ex(8,11); M1(3); after(3)
            ex(11,14); P1(1)
            ex(14,16)
        elif u==2:
            M2(3); after(0)
            ex(0,3); pre(4,"K"); M1(4); after(1)
            ex(3,6); M2(4); after(2)
            ex(6,10); P2(1); after(3)
            ex(10,13); P1(2)
            ex(13,16)
        elif u+2<NU:
            M1(u+2); after(0)
            ex(0,4); M2(u+2)
            if u>t0: pre(u-1,"V")
            after(1)
            ex(4,8); P2(u-1)
            pre(u,"Vl" if u>=t0 else "V"); after(2)
            ex(8,12); P1(u); pre(u+3,"K"); after(3,(u+1) not in sync_before)
            if (u+1) in sync_before:
                g.wait(vm=sync_before[u+1]); g.barrier(); setlv(3)
            ex(12,16)
        elif u==62:
            ex(0,2); P2(61); after(0)
            ex(2,6); after(1)
            ex(6,10); P1(62); after(2); setlv(3)
            ex(10,16)
        elif u==63:
            ex(0,2); P2(62)
            g.wait(lgkm=0); g.q=[]
            g.barrier(); setlv(0)
            for k in range(4): g.ldsread("ds_read_b128",vX+4*k,4,vXR,1024*k)
            ex(2,10); P1(63)
            ex(10,16)
    g.stamp(5)
    if opt.get("fine") or opt.get("qfine"): g.salu(f"s_memtime s[92:93]")
    g.need(R(vX,16))
    g.nop(0)
    P2(NU-1)
    A=vO+16
    g.v(f"v_add_u32 v{T+9}, s48, v{vD}",R(vD),R(T+9))
    g.salu("s_setprio 1")
    g.nop(9)
    def pk(op,d,a,b): g.v(f"{op} {vr(d,2)}, {vr(a,2)}, {vr(b,2)}",R(a,2)+R(b,2),R(d,2))
    pk("v_pk_add_f32",A+12,A+12,vX+12)
    pk("v_pk_add_f32",A+0,A+0,vX+0)
    g.v(f"v_mov_b32 v{T+2}, v{A+12}",R(A+12),R(T+2))
    g.v(f"v_mov_b32 v{T+3}, v{A+12}",R(A+12),R(T+3))
    pk("v_pk_add_f32",A+2,A+2,vX+2)
    pk("v_pk_add_f32",A+4,A+4,vX+4)
    g.v(f"v_permlane32_swap_b32 v{T+2}, v{T+3}",R(T+2,2),R(T+2,2))
    pk("v_pk_add_f32",A+6,A+6,vX+6)
    g.label("L_final")
    g.valu(f"v_rcp_f32 v{T+4}, v{T+3}",R(T+3),R(T+4),trans=True)
    for k in (8,10,14): pk("v_pk_add_f32",A+k,A+k,vX+k)
    def pkm(k): g.v(f"v_pk_mul_f32 {vr(vS+16+k,2)}, {vr(A+k,2)}, {vr(T+4,2)} op_sel_hi:[1,0]",R(A+k,2)+R(T+4),R(vS+16+k,2))
    def cvt(k): g.v(f"v_cvt_pk_bf16_f32 v{vS+k}, v{vS+16+2*k}, v{vS+17+2*k}",R(vS+16+2*k,2),R(vS+k))
    pkm(0); pkm(2); cvt(0); cvt(1)
    pkm(4); pkm(6); g.dswrite("ds_write_b64",vOUT,vS,2,0); cvt(2); cvt(3)
    pkm(8); pkm(10); g.dswrite("ds_write_b64",vOUT,vS+2,2,8); cvt(4); cvt(5)
    pkm(12); pkm(14); g.dswrite("ds_write_b64",vOUT,vS+4,2,16); cvt(6); cvt(7)
    g.salu("s_mov_b32 exec_hi, 0")
    g.dswrite("ds_write_b64",vOUT,vS+6,2,24)
    g.salu("s_mov_b32 exec_hi, -1")
    g.dsread("ds_read_b128",vS+8,4,T+9,0)
    g.dsread("ds_read_b128",vS+12,4,T+9,1024)
    def chk():
        pk("v_pk_add_f32",T+6,A,A+2)
        pk("v_pk_add_f32",T+10,A+4,A+6)
        pk("v_pk_add_f32",T+12,A+8,A+10)
        pk("v_pk_add_f32",T+14,A+12,A+14)
        pk("v_pk_add_f32",T+6,T+6,T+10)
        pk("v_pk_add_f32",T+12,T+12,T+14)
        pk("v_pk_add_f32",T+6,T+6,T+12)
        g.v(f"v_add_f32 v{T+6}, v{T+6}, v{T+7}",R(T+6,2),R(T+6))
        g.v(f"v_fma_f32 v{T+6}, v{T+6}, 0, v{T+3}",R(T+6)+R(T+3),R(T+6))
        g.v(f"v_cmp_le_f32 vcc, 1.0, v{T+6}",R(T+6),[])
        g.v(f"v_cmp_ge_f32 s[42:43], s44, v{T+6}",R(T+6),[])
    sfx=opt.get("stflag","sc1").replace("+"," ")
    g.salu("s_setprio 0")
    if opt.get("chkfirst"): chk()
    g.wait(lgkm=1)
    g.raw(f"buffer_store_dwordx4 {vr(vS+8,4)}, v{vD}, s[20:23], s38 offen {sfx}","vmem",R(vS+8,4)+R(vD),[],load=False)
    g.salu("s_mov_b32 exec_hi, 0xffff")
    g.wait(lgkm=0)
    g.raw(f"buffer_store_dwordx4 {vr(vS+12,4)}, v{vD}, s[20:23], s38 offen offset:1024 {sfx}","vmem",R(vS+12,4)+R(vD),[],load=False)
    g.salu("s_mov_b32 exec_hi, -1")
    if not opt.get("chkfirst"): chk()
    g.nop(3)
    g.salu("s_and_b64 vcc, vcc, s[42:43]")
    g.salu("s_or_b64 vcc, vcc, s[46:47]")
    g.salu("s_cmp_eq_u64 vcc, -1")
    g.salu("s_cbranch_scc0 L_slow")
    if opt.get("stamps") or opt.get("fine") or opt.get("qfine"):
        g.salu("s_mov_b64 exec, -1")
        g.stamp(6); g.wait(vm=0); g.stamp(7)
        g.salu("s_load_dwordx2 s[50:51], s[0:1], 0x28")
        g.wait(lgkm=0)
        g.valu("v_mov_b32 v1, 0",[],["v1"])
        if opt.get("fine") or opt.get("qfine"):
            for k in range(17): g.raw(f"v_writelane_b32 v1, s{60+2*k}, {k}","valu")
        else:
            for k in range(8): g.raw(f"v_writelane_b32 v1, s{60+2*k}, {k}","valu")
            g.salu("s_getreg_b32 s52, hwreg(HW_REG_HW_ID)")
            g.raw(f"v_writelane_b32 v1, s52, 8","valu")
            g.salu("s_getreg_b32 s52, hwreg(HW_REG_XCC_ID)")
            g.raw(f"v_writelane_b32 v1, s52, 9","valu")
        g.salu("s_lshl_b32 s52, s2, 3")
        g.salu("s_add_u32 s52, s52, s28")
        g.salu("s_lshl_b32 s52, s52, 8")
        g.valu(f"v_lshl_add_u32 v0, v{vLANE}, 2, s52",R(vLANE),["v0"])
        g.raw("global_store_dword v0, v1, s[50:51]","vmem")
    if opt.get("enc"):
        a,b,mul=[int(x) for x in opt["enc"].split(",")]
        g.salu("s_mov_b64 exec, -1")
        g.stamp(6); g.wait(vm=0); g.stamp(7)
        g.wait(lgkm=0)
        g.salu(f"s_sub_u32 s52, s{60+2*b}, s{60+2*a}")
        g.salu(f"s_mul_i32 s52, s52, {mul}")
        g.label("L_spin")
        g.salu(("s_memrealtime" if opt.get("rt") else "s_memtime")+" s[54:55]")
        g.wait(lgkm=0)
        g.salu("s_sub_u32 s53, s54, s74")
        g.salu("s_cmp_lt_u32 s53, s52")
        g.salu("s_cbranch_scc1 L_spin")
    g.label("L_end")
    g.raw("s_endpgm","salu")
    errs=g.check()
    return g, slow_path(opt), errs

def slow_path(opt):
    g=G({}); T=vT
    A=vO+16; Qr=vQ+8; KFr=vKF; VFr=vV; Sr=vS; m=T+8; VA=vVA+1; MK=vVA+2
    g.label("L_slow")
    g.wait(vm=0,lgkm=0)
    g.salu("s_mov_b64 s[46:47], -1")
    g.salu("s_add_u32 s16, s6, s29"); g.salu("s_addc_u32 s17, s7, 0")
    g.salu("s_add_u32 s24, s8, s29"); g.salu("s_addc_u32 s25, s9, 0")
    g.salu(f"s_mov_b32 s26, {HEADB}"); g.salu("s_mov_b32 s27, 0x20000")
    g.salu("s_lshl_b32 s49, s28, 12")
    g.salu(f"s_add_u32 s49, s49, {VRING}")
    g.v(f"v_add_u32 v{vK}, s49, v{vQO}",R(vQO),R(vK))
    g.salu("s_mul_i32 s41, s36, 3584")
    g.salu(f"s_add_u32 s41, s41, {VRING-2048}")
    g.salu("s_sub_u32 s41, s49, s41")
    g.v(f"v_add_u32 v{VA}, s41, v{vVA}",R(vVA),R(VA))
    g.v(f"v_and_b32 v{T+10}, 0x13, v{vLANE}",R(vLANE),R(T+10))
    g.v(f"v_cmp_eq_u32 vcc, 0x13, v{T+10}",R(T+10),[])
    g.nop(1)
    g.v(f"v_cndmask_b32 v{VA}, v{VA}, v{vVA}, vcc",R(VA)+R(vVA),R(VA))
    g.v(f"v_cmp_gt_u32 vcc, 32, v{vLANE}",R(vLANE),[])
    g.nop(1)
    g.v(f"v_cndmask_b32 v{MK}, 0, -1, vcc",[],R(MK))
    for k in range(16): g.v(f"v_mov_b32 v{A+k}, 0",[],R(A+k))
    for k in range(16): g.v(f"v_mov_b32 v{vX+k}, 0",[],R(vX+k))
    g.v(f"v_mov_b32 v{m}, 0xff7fffff",[],R(m))
    g.salu("s_mov_b32 s30, 0")
    g.label("L_slow_loop")
    g.salu("s_mov_b32 m0, s49")
    g.nop(0)
    for k in range(2): g.raw(f"buffer_load_dwordx4 v{vD}, s[16:19], s30 offen offset:{1024*k} lds","vmem",R(vD),[],load=False)
    g.salu("s_add_u32 m0, s49, 2048")
    g.nop(0)
    for k in range(2): g.raw(f"buffer_load_dwordx4 v{vD}, s[24:27], s30 offen offset:{1024*k} lds","vmem",R(vD),[],load=False)
    g.wait(vm=0)
    for rho in range(4): g.dsread("ds_read_b64",KFr+2*rho,2,vK,8*rho)
    for i in range(4): g.dsread("ds_read_b64_tr_b16",VFr+2*i,2,VA,[0,224,896,1120][i])
    g.wait(lgkm=0)
    for k in range(2): g.v(f"v_and_b32 v{KFr+k}, v{KFr+k}, v{MK}",R(KFr+k)+R(MK),R(KFr+k))
    g.nop(1)
    g.mfma(Sr,KFr,Qr,None); g.mfma(Sr,KFr+4,Qr+4,Sr)
    g.nop(11)
    t=T+12
    g.v(f"v_max3_f32 v{t}, v{Sr}, v{Sr+1}, v{m}",R(Sr,2)+R(m),R(t))
    for k in range(1,8): g.v(f"v_max3_f32 v{t}, v{Sr+2*k}, v{Sr+2*k+1}, v{t}",R(Sr+2*k,2)+R(t),R(t))
    g.v(f"v_mov_b32 v{t+1}, v{t}",R(t),R(t+1))
    g.nop(1)
    g.v(f"v_permlane32_swap_b32 v{t}, v{t+1}",R(t,2),R(t,2))
    g.nop(1)
    g.v(f"v_max_f32 v{t}, v{t}, v{t+1}",R(t,2),R(t))
    g.v(f"v_sub_f32 v{t+1}, v{m}, v{t}",R(m)+R(t),R(t+1))
    g.valu(f"v_exp_f32 v{t+1}, v{t+1}",R(t+1),R(t+1),trans=True)
    g.v(f"v_mov_b32 v{m}, v{t}",R(t),R(m))
    for k in range(16): g.v(f"v_sub_f32 v{Sr+k}, v{Sr+k}, v{t}",R(Sr+k)+R(t),R(Sr+k))
    for k in range(16): g.exp(Sr+k)
    for k in range(16): g.v(f"v_mul_f32 v{A+k}, v{A+k}, v{t+1}",R(A+k)+R(t+1),R(A+k))
    g.nop(1)
    g.smfmac(A,VFr,Sr,vIDX); g.smfmac(A,VFr+4,Sr+8,vIDX)
    g.nop(11)
    g.salu(f"s_add_u32 s30, s30, {TILE}")
    g.salu(f"s_cmp_lt_u32 s30, {HEADB}")
    g.salu("s_cbranch_scc1 L_slow_loop")
    g.v(f"v_mov_b32 v{T+2}, v{A+12}",R(A+12),R(T+2))
    g.v(f"v_mov_b32 v{T+3}, v{A+12}",R(A+12),R(T+3))
    g.nop(1)
    g.v(f"v_permlane32_swap_b32 v{T+2}, v{T+3}",R(T+2,2),R(T+2,2))
    g.nop(1)
    g.salu("s_branch L_final")
    e=g.check()
    if e: print("slow path errs:",e,file=sys.stderr)
    return g

HDR=f"""; Fused attention, B*H=32 heads, S=2048, Dh=28 (bf16).
; @launch grid=(256,1,1) block=(512,1,1) lds={LDS}
.amdgcn_target "amdgcn-amd-amdhsa--gfx950"
.text
.globl {NAME}_kernel
.p2align 8
.type {NAME}_kernel,@function
{NAME}_kernel:
"""
FTR=f""".section .rodata,"a"
.p2align 6
.amdhsa_kernel {NAME}_kernel
  .amdhsa_next_free_vgpr {NV}
  .amdhsa_next_free_sgpr 96
  .amdhsa_accum_offset {NV}
  .amdhsa_group_segment_fixed_size 0
  .amdhsa_kernarg_size 48
  .amdhsa_user_sgpr_count 2
  .amdhsa_user_sgpr_kernarg_segment_ptr 1
  .amdhsa_system_sgpr_workgroup_id_x 1
.end_amdhsa_kernel
"""
if __name__=="__main__":
    opt={}
    out=sys.argv[1]
    for a in sys.argv[2:]:
        k,_,v=a.partition("="); opt[k]=v or 1
    g,sl,errs=build(opt)
    for e in errs: print("HAZARD:",e,file=sys.stderr)
    open(out,"w").write(HDR+g.text()+sl.text()+FTR)
```

```python
import sys
HEAD = '.amdgcn_target "amdgcn-amd-amdhsa--gfx950"\n.text\n'
def kernel(name, body, iters, nvgpr=128, init="", block=1024, post=""):
    s = f"""
.globl {name}
.p2align 8
.type {name},@function
{name}:
    s_load_dwordx4 s[4:7], s[0:1], 0
    v_lshrrev_b32 v1, 6, v0
    s_nop 1
    v_readfirstlane_b32 s21, v1
    v_and_b32 v2, 63, v0
"""
    for r in range(4, nvgpr):
        s += f"    v_mov_b32 v{r}, 1.0\n" if r % 3 else f"    v_mov_b32 v{r}, 0.5\n"
    s += init
    s += f"""
    s_waitcnt lgkmcnt(0)
    s_barrier
    s_memtime s[8:9]
    s_memrealtime s[10:11]
    s_waitcnt lgkmcnt(0)
    s_mov_b32 s20, {iters}
    .p2align 6
{name}_loop:
{body}
    s_sub_u32 s20, s20, 1
    s_cmp_lg_u32 s20, 0
    s_cbranch_scc1 {name}_loop
    s_nop 15
    s_nop 15
    s_waitcnt vmcnt(0) lgkmcnt(0)
    s_memtime s[12:13]
    s_memrealtime s[14:15]
    s_waitcnt lgkmcnt(0)
{post}
    s_sub_u32 s12, s12, s8
    s_subb_u32 s13, s13, s9
    s_sub_u32 s14, s14, s10
    s_subb_u32 s15, s15, s11
    v_mov_b32 v4, s12
    v_mov_b32 v5, s13
    v_mov_b32 v6, s14
    v_mov_b32 v7, s15
    s_mul_i32 s23, s2, WPG_{name}
    s_add_u32 s23, s23, s21
    s_lshl_b32 s23, s23, 4
    v_mov_b32 v3, s23
    v_cmp_eq_u32 vcc, 0, v2
    s_and_saveexec_b64 s[24:25], vcc
    s_cbranch_execz {name}_end
    global_store_dwordx4 v3, v[4:7], s[4:5]
{name}_end:
    s_endpgm
"""
    s = f".set WPG_{name}, {block//64}\n" + s
    kd = f"""
.section .rodata,"a"
.p2align 6
.amdhsa_kernel {name}
  .amdhsa_next_free_vgpr {nvgpr}
  .amdhsa_next_free_sgpr 64
  .amdhsa_accum_offset {((nvgpr+3)//4)*4 if nvgpr<=256 else 256}
  .amdhsa_group_segment_fixed_size 0
  .amdhsa_kernarg_size 16
  .amdhsa_user_sgpr_count 2
  .amdhsa_user_sgpr_kernarg_segment_ptr 1
  .amdhsa_system_sgpr_workgroup_id_x 1
.end_amdhsa_kernel
.text
"""
    md = f"""  - .name: {name}
    .symbol: {name}.kd
    .kernarg_segment_size: 16
    .kernarg_segment_align: 8
    .group_segment_fixed_size: 0
    .private_segment_fixed_size: 0
    .wavefront_size: 64
    .sgpr_count: 64
    .vgpr_count: {nvgpr}
    .max_flat_workgroup_size: {block}
    .args:
      - {{.name: kernargs, .size: 16, .offset: 0, .value_kind: by_value}}
"""
    return s + kd, md

def build(kernels, path):
    code = HEAD
    md = "\n.amdgpu_metadata\n---\namdhsa.version: [1, 2]\namdhsa.kernels:\n"
    for c, m in kernels:
        code += c
        md += m
    md += "...\n.end_amdgpu_metadata\n"
    open(path, "w").write(code + md)
```

```python
from gen import *
ks=[]; specs=[]
IT=200
init="""    v_and_b32 v5, 31, v2
    v_lshrrev_b32 v6, 5, v2
    v_mul_u32_u24 v5, 56, v5
    v_mad_u32_u24 v3, v6, 24, v5
    v_lshlrev_b32 v4, 4, v2
"""
def add(name, ls, blks=(256,512)):
    for blk in blks:
        n=f"{name}_b{blk}"
        ks.append(kernel(n,"\n".join(ls),IT,nvgpr=128,init=init,block=blk)); specs.append(f"{n}:256:{blk}:65536:{IT}")
add("k64",[f"    ds_read_b64 v[{8+2*(i%16)}:{9+2*(i%16)}], v3 offset:{1792*(i//4)+8*(i%4)}" for i in range(64)]+["    s_waitcnt lgkmcnt(0)"] )
add("k128",[f"    ds_read_b128 v[{8+4*(i%8)}:{11+4*(i%8)}], v3 offset:{1792*(i//2)+16*(i%2)}" for i in range(32)]+["    s_waitcnt lgkmcnt(0)"])
add("lin128",[f"    ds_read_b128 v[{8+4*(i%8)}:{11+4*(i%8)}], v4 offset:{1024*i}" for i in range(32)]+["    s_waitcnt lgkmcnt(0)"])
add("k2x64",[f"    ds_read2_b64 v[{8+4*(i%8)}:{11+4*(i%8)}], v3 offset0:{2*(i%2)} offset1:{2*(i%2)+1}" for i in range(32)]+["    s_waitcnt lgkmcnt(0)"])
build(ks,"mb17.s"); print(" ".join(specs))
```

```python
import sys, math, struct
from asmlib import *

NAME="standalone__fused_io_aware_attn__prompt"
HEADB=114688; BLK=7168; TILE=1792
KRING=0; NSLOT=8; VRING=NSLOT*BLK; ONES=2*NSLOT*BLK; XCH=ONES+4096; LDS=XCH+32768
REG=[KRING,VRING,XCH]
def f2u(x): return struct.unpack("<I",struct.pack("<f",x))[0]
CSC=math.log2(math.e)/math.sqrt(28.0)

vA0=0; vA1=1; vLANE=2; vK=3; vD=4; vQO=5
vVA=6
vOUT=14; vIDX=15
vV=16
vKF=40
vS=64
vO=128
vQ=192
vT=224
vVH0=240; vVH1=241; vST=242; vA2=243; vXW=244
NV=248
NU=64; T0=52

class G(Prog):
    def __init__(s, opt):
        super().__init__(); s.opt=opt; s.q=[]
    def ldsread(s, op, d, n, addr, off):
        s.dsread(op,d,n,addr,off); s.q.append(set(R(d,n)))
    def ldswrite(s, op, addr, d, n, off):
        s.dswrite(op,addr,d,n,off); s.q.append(set(["W"]))
    def need(s, regs):
        regs=set(regs); last=-1
        for k,x in enumerate(s.q):
            if x&regs: last=k
        if last>=0:
            n=len(s.q)-1-last
            s.wait(lgkm=n); s.q=s.q[last+1:]
    def stamp(s, k):
        if s.opt.get("stamps") or s.opt.get("enc"):
            s.raw(f"{'s_memrealtime' if s.opt.get('rt') else 's_memtime'} s[{60+2*k}:{61+2*k}]","salu")
    def barrier(s): s.raw("s_barrier","salu")
    def v(s, text, rd, wr): s.valu(text, rd, wr)

def S(u): return vS+16*(u&3)
def tile(u):
    if u<4:   return (0,u,u&1,3)
    if u>=T0:
        n=13+(u-T0)%3
        return (n,None,{13:0,14:2,15:1}[n],(u-T0)//3)
    n=u>>2;   return (n,None,(n+1)&1,u&3)
def KB(u): return vKF+8*tile(u)[2]
def VB(u): return vV+8*tile(u)[2]
def QB(u): return vQ+8*tile(u)[3]
def OB(u): return vO+16*tile(u)[3]
def kread(g,u,rho):
    n,kt,b,t=tile(u)
    if kt is None: g.ldsread("ds_read_b64", KB(u)+2*rho, 2, vK, KRING+(n%NSLOT)*BLK+8*rho)
    else:          g.ldsread("ds_read_b64", KB(u)+2*rho, 2, vQO, KRING+kt*TILE+8*rho)
def vread(g,u,i):
    n,kt,b,t=tile(u)
    o=[0,224,896,1120][i]
    if kt is None: g.ldsread("ds_read_b64_tr_b16", VB(u)+2*i, 2, vVA+(n%NSLOT), o)
    else:          g.ldsread("ds_read_b64_tr_b16", VB(u)+2*i, 2, vVH0+(kt>>1), (kt&1)*TILE+o)
def dma(g,b,k):
    if k==0:
        g.salu(f"s_add_u32 m0, s31, {(b%NSLOT)*BLK}")
        g.salu(f"s_add_u32 s30, s34, {b*BLK}")
    g.raw(f"buffer_load_dwordx4 v{vD}, s[16:19], s30 offen offset:{1024*k} lds","vmem",R(vD),[],load=False)

def build(opt):
    g=G(opt); T=vT
    def M1(u): g.need(R(KB(u),4)+R(QB(u),4)); g.mfma(S(u), KB(u), QB(u), None)
    def M2(u): g.need(R(KB(u)+4,4)+R(QB(u)+4,4)); g.mfma(S(u), KB(u)+4, QB(u)+4, S(u))
    def P1(u): g.need(R(VB(u),4)); g.smfmac(OB(u), VB(u), S(u), vIDX)
    def P2(u): g.need(R(VB(u)+4,4)); g.smfmac(OB(u), VB(u)+4, S(u)+8, vIDX)
    def pk(op,d,a,b): g.v(f"{op} {vr(d,2)}, {vr(a,2)}, {vr(b,2)}",R(a,2)+R(b,2),R(d,2))
    QO=vQ+24
    g.salu("s_load_dwordx8 s[4:11], s[0:1], 0x0")
    g.salu("s_cmp_ge_u32 s2, 0x100")
    g.salu("s_cbranch_scc1 L_end")
    g.salu("s_setprio 3")
    g.stamp(0)
    g.salu("s_getpc_b64 s[50:51]")
    g.label("L_pc")
    g.salu("s_lshr_b32 s52, s2, 3")
    g.salu("s_lshl_b32 s52, s52, 9")
    g.v(f"v_and_b32 v{T+15}, 0x1c0, v0",["v0"],R(T+15))
    g.v(f"v_add_u32 v{T+15}, s52, v{T+15}",R(T+15),R(T+15))
    g.v(f"v_min_u32 v{T+15}, L_end-L_pc, v{T+15}",R(T+15),R(T+15))
    g.raw(f"global_load_dword v{T+15}, v{T+15}, s[50:51]","vmem",R(T+15),R(T+15),load=True)
    g.v("v_lshrrev_b32 v1, 6, v0",["v0"],["v1"])
    g.v(f"v_and_b32 v{vLANE}, 63, v0",["v0"],R(vLANE))
    g.v("v_readfirstlane_b32 s28, v1",["v1"],[])
    g.salu("s_and_b32 s3, s2, 7")
    g.salu("s_lshr_b32 s29, s2, 6")
    g.salu("s_lshl_b32 s29, s29, 3")
    g.salu("s_add_u32 s3, s3, s29")
    g.salu(f"s_mul_i32 s29, s3, {HEADB}")
    g.salu("s_bfe_u32 s33, s2, 0x30003")
    g.salu("s_mul_i32 s33, s33, 14336")
    g.salu("s_add_u32 s33, s33, s29")
    g.v(f"v_and_b32 v{T}, 31, v{vLANE}",R(vLANE),R(T))
    g.v(f"v_lshrrev_b32 v{T+1}, 5, v{vLANE}",R(vLANE),R(T+1))
    g.v(f"v_mul_u32_u24 v{T}, 56, v{T}",R(T),R(T))
    g.v(f"v_mad_u32_u24 v{vQO}, v{T+1}, 24, v{T}",R(T,2),R(vQO))
    g.v(f"v_lshlrev_b32 v{vD}, 4, v{vLANE}",R(vLANE),R(vD))
    g.salu(f"s_mul_i32 s38, s28, {TILE}")
    g.salu("s_lshr_b32 s36, s28, 2")
    g.salu("s_and_b32 s39, s28, 1")
    g.salu("s_lshl_b32 s34, s36, 1")
    g.salu("s_add_u32 s34, s34, s39")
    g.salu("s_lshl_b32 s34, s34, 11")
    g.salu("s_min_u32 s34, s34, 5120")
    g.salu("s_mov_b32 s14, 14336")
    g.salu("s_mov_b32 s15, 0x20000")
    g.salu(f"s_mov_b32 s18, {HEADB}")
    g.salu("s_mov_b32 s19, 0x20000")
    g.salu("s_bitcmp1_b32 s28, 1")
    g.salu(f"s_cselect_b32 s31, {VRING}, {KRING}")
    g.salu("s_add_u32 s31, s31, s34")
    g.salu("s_mov_b32 m0, s31")
    g.v(f"v_mov_b32 v{T+2}, 0x3f80",[],R(T+2))
    g.v(f"v_mov_b32 v{T+3}, 0",[],R(T+3))
    g.v(f"v_lshlrev_b32 v{T+4}, 3, v0",["v0"],R(T+4))
    g.v(f"v_add_u32 v{T+4}, {ONES}, v{T+4}",R(T+4),R(T+4))
    g.wait(lgkm=0)
    g.stamp(1)
    g.salu("s_bitcmp1_b32 s28, 1")
    g.salu("s_cselect_b32 s16, s8, s6")
    g.salu("s_cselect_b32 s17, s9, s7")
    g.salu("s_add_u32 s16, s16, s29")
    g.salu("s_addc_u32 s17, s17, 0")
    g.raw(f"buffer_load_dwordx4 v{vD}, s[16:19], s34 offen lds","vmem",R(vD),[],load=False)
    g.raw(f"buffer_load_dwordx4 v{vD}, s[16:19], s34 offen offset:1024 lds","vmem",R(vD),[],load=False)
    g.salu("s_setprio 2")
    g.salu("s_add_u32 s12, s4, s33")
    g.salu("s_addc_u32 s13, s5, 0")
    for k in range(2):
        g.raw(f"buffer_load_dwordx4 {vr(QO+4*k,4)}, v{vQO}, s[12:15], s38 offen offset:{16*k}","vmem",R(vQO),R(QO+4*k,4),load=True)
    g.salu("s_setprio 1")
    dma(g,1,0); dma(g,1,1)
    g.salu("s_setprio 0")
    g.stamp(2)
    g.ldswrite("ds_write_b64",T+4,T+2,2,0)
    g.salu("s_add_u32 s20, s10, s33")
    g.salu("s_addc_u32 s21, s11, 0")
    g.salu("s_mov_b32 s22, 14336")
    g.salu("s_mov_b32 s23, 0x20000")
    g.salu("s_mov_b32 s44, 0x5f800000")
    g.salu("s_mov_b64 s[46:47], 0")
    g.v(f"v_mov_b32 v{T+10}, 0x{f2u(CSC):08x}",[],R(T+10))
    g.v(f"v_mov_b32 v{T+11}, 0x{f2u(CSC):08x}",[],R(T+11))
    g.v(f"v_cmp_eq_u32 vcc, 0, v{T+1}",R(T+1),[])
    g.v(f"v_mov_b32 v{T+14}, 0xffff0000",[],R(T+14))
    Z=S(2)
    for k in range(4): g.v(f"v_mov_b32 v{Z+k}, 0",[],R(Z+k))
    g.v(f"v_cndmask_b32 v{T+12}, 0, v{T+10}, vcc",R(T+10),R(T+12))
    g.v(f"v_cndmask_b32 v{T+13}, 0, v{T+10}, vcc",R(T+10),R(T+13))
    for t in (3,0): g.mfma(vO+16*t,Z,Z,None)
    g.salu("s_and_b32 s35, s28, 3")
    g.salu(f"s_mul_i32 s41, s35, {TILE}")
    g.v(f"v_add_u32 v{vK}, s41, v{vQO}",R(vQO),R(vK))
    g.salu("s_lshl_b32 s48, s28, 12")
    g.v(f"v_lshl_add_u32 v{vOUT}, v{T+1}, 5, v{T}",R(T,2),R(vOUT))
    g.v(f"v_add_u32 v{vOUT}, s48, v{vOUT}",R(vOUT),R(vOUT))
    g.v(f"v_add_u32 v{vST}, s48, v{vD}",R(vD),R(vST))
    g.v(f"v_add_u32 v{vXW}, {XCH}, v{vST}",R(vST),R(vXW))
    OWN=["s40","s53","s54"]
    g.salu("s_and_b32 s37, s28, 4")
    for t in range(3):
        g.salu(f"s_add_u32 {OWN[t]}, s28, {t+1}")
        g.salu(f"s_and_b32 {OWN[t]}, {OWN[t]}, 3")
        g.salu(f"s_or_b32 {OWN[t]}, {OWN[t]}, s37")
        g.salu(f"s_lshl_b32 {OWN[t]}, {OWN[t]}, 12")
    g.v(f"v_add_u32 v{T+9}, {XCH}, v{vD}",R(vD),R(T+9))
    for t,a in enumerate((vA0,vA1,vA2)): g.v(f"v_add_u32 v{a}, {OWN[t]}, v{T+9}",R(T+9),R(a))
    for t in (1,2): g.mfma(vO+16*t,Z,Z,None)
    g.v(f"v_bfe_u32 v{T+5}, v{vLANE}, 2, 2",R(vLANE),R(T+5))
    g.v(f"v_lshl_add_u32 v{T+5}, v{T+1}, 3, v{T+5}",R(T+1)+R(T+5),R(T+5))
    g.v(f"v_mul_u32_u24 v{T+5}, 56, v{T+5}",R(T+5),R(T+5))
    g.v(f"v_and_b32 v{T+6}, 16, v{vLANE}",R(vLANE),R(T+6))
    g.v(f"v_add_u32 v{T+5}, v{T+5}, v{T+6}",R(T+5,2),R(T+5))
    g.v(f"v_and_b32 v{T+6}, 2, v{vLANE}",R(vLANE),R(T+6))
    g.v(f"v_lshl_add_u32 v{T+5}, v{T+6}, 2, v{T+5}",R(T+5,2),R(T+5))
    g.v(f"v_and_b32 v{T+6}, 1, v{vLANE}",R(vLANE),R(T+6))
    g.v(f"v_lshl_add_u32 v{T+5}, v{T+6}, 5, v{T+5}",R(T+5,2),R(T+5))
    g.v(f"v_and_b32 v{T+6}, 0x13, v{vLANE}",R(vLANE),R(T+6))
    g.v(f"v_cmp_eq_u32 vcc, 0x13, v{T+6}",R(T+6),[])
    g.v(f"v_lshlrev_b32 v{T+7}, 6, v{T+1}",R(T+1),R(T+7))
    g.v(f"v_sub_u32 v{T+7}, {ONES+224}, v{T+7}",R(T+7),R(T+7))
    g.v(f"v_add_u32 v{vVH0}, {VRING}, v{T+5}",R(T+5),R(vVH0))
    g.v(f"v_add_u32 v{vVH1}, {2*TILE}, v{vVH0}",R(vVH0),R(vVH1))
    g.v(f"v_add_u32 v{vVA}, s41, v{vVH0}",R(vVH0),R(vVA))
    g.v(f"v_mov_b32 v{T+8}, {BLK}",[],R(T+8))
    for r in (vVH0,vVH1,vVA): g.v(f"v_cndmask_b32 v{r}, v{r}, v{T+7}, vcc",R(r)+R(T+7),R(r))
    g.v(f"v_cndmask_b32 v{T+8}, v{T+8}, 0, vcc",R(T+8),R(T+8))
    for k in range(1,NSLOT):
        g.v(f"v_add_u32 v{vVA+k}, v{vVA+k-1}, v{T+8}",R(vVA+k-1)+R(T+8),R(vVA+k))
    g.v(f"v_mov_b32 v{vIDX}, 0xdddddddd",[],R(vIDX))
    if opt.get("jit"):
        g.salu(f"s_cmp_lg_u32 s28, {int(opt['jit'])%8}"); g.salu("s_cbranch_scc1 L_jp"); g.salu("s_sleep 100"); g.label("L_jp")
    g.wait(vm=4,lgkm=0); g.q=[]
    g.barrier()
    g.salu("s_setprio 3")
    g.stamp(3)
    for rho in range(4): kread(g,0,rho)
    for rho in range(4): kread(g,1,rho)
    for i in range(4): vread(g,0,i)
    for k in range(8):
        if k%4==0: g.wait(vm=3-k//4)
        r=QO+k; t=S(3)+2*k
        cc=T+12 if k<2 else T+10
        g.v(f"v_lshlrev_b32 v{t}, 16, v{r}",R(r),R(t))
        g.v(f"v_and_b32 v{t+1}, v{T+14}, v{r}",R(r)+R(T+14),R(t+1))
        g.v(f"v_pk_mul_f32 {vr(t,2)}, {vr(t,2)}, {vr(cc,2)}",R(t,2)+R(cc,2),R(t,2))
        g.v(f"v_cvt_pk_bf16_f32 v{r}, v{t}, v{t+1}",R(t,2),R(r))
        if k==4: M1(0)
    g.stamp(4)
    g.ldswrite("ds_write_b128",vXW,QO,4,0)
    g.nop(0)
    M2(0)
    for rho in range(4): kread(g,2,rho)
    M1(1)
    g.ldswrite("ds_write_b128",vXW,QO+4,4,1024)
    g.nop(5)
    dma_at={0:2,1:3,2:4,3:5,5:6,6:7,12:8,14:9,16:10,28:11,29:12,30:13,31:14,40:15}
    sync_before={2:4,4:4,12:0,28:0,40:0,48:0,54:None}
    xb01=int(opt.get("xb01",4*60+3)); xbar=4*63
    lv={}
    fr=[float(x) for x in opt["lv"].split(",")]
    bars=[0]+[4*(x-1)+3 for x in sorted(sync_before)]+[xb01,xbar]
    for si,(a,b) in enumerate(zip(bars[:-1],bars[1:])):
        lv[a]=3
        for n,f in enumerate([float(x) for x in opt[f"lv{si}"].split(",")] if f"lv{si}" in opt else fr):
            p=a+int(round((b-a)*f))
            if a<p<b: lv[p]=2-n
    ep=[int(x) for x in opt["ep"].split(",")]
    lv[xbar]=ep[0]
    for p in [p for p in lv if p<bars[1]]: del lv[p]
    for p,x in eval(opt["hp"]): lv[p]=x
    plan={}
    def put(u,k,f): plan.setdefault((u,k),[]).append(f)
    for r in range(4): put(0,r//2,lambda r=r: kread(g,3,r))
    for i in range(4): put(0,1+i//2,lambda i=i: vread(g,1,i))
    for i in range(4): put(1,0 if i<2 else 2,lambda i=i: vread(g,2,i))
    for i in range(4): put(2,(0 if i<2 else 1),lambda i=i: vread(g,3,i))
    for k in range(2): put(2,2,lambda k=k: g.ldsread("ds_read_b128",vQ+16+4*k,4,vA2,1024*k))
    for i in range(4): put(3,i,lambda i=i: vread(g,4,i))
    for n in range(2,14):
        for r in range(4): put(4*(n-1),r,lambda n=n,r=r: kread(g,4*n,r))
        for i in range(4): put(4*(n-1)+2,i,lambda n=n,i=i: vread(g,4*n,i))
    for r in range(4): put(49,r,lambda r=r: kread(g,53,r))
    for r in range(4): put(50 if r<2 else 51,2+r if r<2 else r-2,lambda r=r: kread(g,54,r))
    for i in range(4): put(51 if i<2 else 52,2+i if i<2 else i-2,lambda i=i: vread(g,53,i))
    for i in range(4): put(53,i,lambda i=i: vread(g,54,i))
    AD=(vA0,vA1,vA2)
    for t in (0,1): put(54,t,lambda t=t: g.v(f"v_subrev_u32 v{AD[t]}, {XCH-REG[t]}, v{AD[t]}",R(AD[t]),R(AD[t])))
    wpos=eval(opt.get("wpos","[(56,1),(56,3),(57,1),(57,3), (59,1),(59,2),(59,3),(60,0), (61,3),(61,3),(62,0),(62,0)]"))
    for n,(uu,pp) in enumerate(wpos):
        put(uu,pp,lambda t=n//4,k=n%4: g.ldswrite("ds_write_b128",AD[t],vO+16*t+4*k,4,1024*k))
    apos=eval(opt.get("apos","(62,2)"))
    def add01():
        g.need(R(vO,32))
        for k in range(0,16,2): pk("v_pk_add_f32",vO+k,vO+k,vO+16+k)
    for u in range(NU):
        g.comment(f"slot {u} tile {tile(u)}")
        if opt.get("fine"):
            f0,fst=[int(x) for x in (opt["fine"] if opt["fine"]!=1 else "0,4").split(",")]
            if u>=f0 and (u-f0)%fst==0 and (u-f0)//fst<16:
                k=(u-f0)//fst
                g.salu(f"s_memtime s[{60+2*k}:{61+2*k}]")
        if opt.get("jit"):
            import random
            rr=random.Random(int(opt["jit"])*1000+u)
            if rr.random()<0.4:
                g.salu(f"s_cmp_lg_u32 s28, {rr.randrange(8)}")
                g.salu(f"s_cbranch_scc1 L_j{u}")
                g.salu(f"s_sleep {rr.randrange(8,64)}")
                g.label(f"L_j{u}")
        E=[S(u)+k for k in range(16)]
        def ex(a,b):
            for k in range(a,b): g.exp(E[k])
        def setlv(k):
            if 4*u+k in lv: g.salu(f"s_setprio {lv[4*u+k]}")
        def after(k,dolv=True):
            if dolv and 4*u+k!=xb01: setlv(k)
            if u in dma_at and k in(0,2): dma(g,dma_at[u],k//2)
            for f in plan.get((u,k),[]): f()
            if 4*u+k==xb01:
                g.need(["W"]); g.barrier(); setlv(k)
                for t in (0,1):
                    for kk in range(4): g.ldsread("ds_read_b128",vO+16*t+4*kk,4,vST,REG[t]+1024*kk)
            if (u,k)==apos: add01()
        def pre(u2,which):
            if u2>=NU: return
            if which=="K": g.need(R(KB(u2),8)+R(QB(u2),8))
            elif which=="Vl": g.need(R(VB(u2),4))
            elif which=="Vh": g.need(R(VB(u2)+4,4))
            else: g.need(R(VB(u2),8))
        if u==0:
            ex(0,2); M2(1); pre(2,"K"); after(0)
            ex(2,6); M1(2); after(1)
            ex(6,10); M2(2); pre(0,"V"); after(2)
            ex(10,14); P1(0); pre(3,"K"); after(3)
            ex(14,16)
        elif u==2:
            ex(0,2); P2(1); after(0)
            ex(2,6); pre(4,"K"); M1(4); after(1)
            ex(6,10); M2(4); pre(2,"Vl"); after(2)
            ex(10,13); P1(2); pre(5,"K"); after(3)
            ex(13,16)
        elif u==61:
            ex(0,2); P2(60); after(0)
            ex(2,5); M1(63); after(1)
            ex(5,9); M2(63); after(2)
            ex(9,13); P1(61); after(3)
            ex(13,16)
        elif u+2<NU:
            M1(u+2); after(0)
            ex(0,4); M2(u+2); pre(u-1,"Vh"); after(1)
            ex(4,8); P2(u-1); pre(u,"Vl"); after(2)
            ex(8,12); P1(u)
            if u!=1: pre(u+3,"K")
            after(3,(u+1) not in sync_before)
            if (u+1) in sync_before:
                if u==1: g.need(["W"])
                if sync_before[u+1] is not None: g.wait(vm=sync_before[u+1])
                g.barrier(); setlv(3)
                if u==1:
                    kread(g,4,0); kread(g,4,1)
                    g.ldsread("ds_read_b128",vQ,4,vA0,0)
                    kread(g,4,2); kread(g,4,3)
                    g.ldsread("ds_read_b128",vQ+4,4,vA0,1024)
                    for k in range(2): g.ldsread("ds_read_b128",vQ+8+4*k,4,vA1,1024*k)
            ex(12,16)
        elif u==62:
            ex(0,2); P2(61); after(0)
            ex(2,6); after(1)
            ex(6,10); P1(62); after(2); after(3)
            ex(10,16)
        elif u==63:
            ex(0,2); P2(62)
            g.wait(lgkm=0); g.q=[]
            g.barrier(); setlv(0)
            for k in range(4): g.ldsread("ds_read_b128",vO+32+4*k,4,vXW,1024*k)
            ex(2,10); P1(63)
            if ep[1]!=ep[0]: g.salu(f"s_setprio {ep[1]}")
            ex(10,16)
    g.stamp(5)
    if opt.get("fine"): g.salu(f"s_memtime s[92:93]")
    g.need(R(vO+32,16))
    g.nop(0)
    P2(NU-1)
    A=vO+48; X=vO
    g.salu(f"s_setprio {ep[2]}")
    g.nop(2)
    for k in (12,0,2,4,6,8,10,14): pk("v_pk_add_f32",X+k,X+k,vO+32+k)
    pk("v_pk_add_f32",A+12,A+12,X+12)
    pk("v_pk_add_f32",A+0,A+0,X+0)
    g.v(f"v_mov_b32 v{T+2}, v{A+12}",R(A+12),R(T+2))
    g.v(f"v_mov_b32 v{T+3}, v{A+12}",R(A+12),R(T+3))
    pk("v_pk_add_f32",A+2,A+2,X+2)
    pk("v_pk_add_f32",A+4,A+4,X+4)
    g.v(f"v_permlane32_swap_b32 v{T+2}, v{T+3}",R(T+2,2),R(T+2,2))
    pk("v_pk_add_f32",A+6,A+6,X+6)
    g.label("L_final")
    g.valu(f"v_rcp_f32 v{T+4}, v{T+3}",R(T+3),R(T+4),trans=True)
    for k in (8,10,14): pk("v_pk_add_f32",A+k,A+k,X+k)
    def pkm(k): g.v(f"v_pk_mul_f32 {vr(vS+16+k,2)}, {vr(A+k,2)}, {vr(T+4,2)} op_sel_hi:[1,0]",R(A+k,2)+R(T+4),R(vS+16+k,2))
    def cvt(k): g.v(f"v_cvt_pk_bf16_f32 v{vS+k}, v{vS+16+2*k}, v{vS+17+2*k}",R(vS+16+2*k,2),R(vS+k))
    for k in (8,10,12,14): pkm(k)
    for k in (4,5,6,7): cvt(k)
    pkm(0)
    g.raw(f"ds_write2_b64 v{vOUT}, {vr(vS+4,2)}, {vr(vS+6,2)} offset0:2 offset1:3","ds",R(vOUT)+R(vS+4,4),[],load=False)
    for k in (2,4,6): pkm(k)
    for k in (0,1,2,3): cvt(k)
    g.raw(f"ds_write2_b64 v{vOUT}, {vr(vS,2)}, {vr(vS+2,2)} offset0:0 offset1:1","ds",R(vOUT)+R(vS,4),[],load=False)
    g.dsread("ds_read_b128",vS+8,4,vST,0)
    g.dsread("ds_read_b128",vS+12,4,vST,1024)
    g.salu(f"s_setprio {ep[3]}")
    g.wait(lgkm=1)
    g.raw(f"buffer_store_dwordx4 {vr(vS+8,4)}, v{vD}, s[20:23], s38 offen sc1","vmem",R(vS+8,4)+R(vD),[],load=False)
    g.salu("s_mov_b32 exec_hi, 0xffff")
    g.wait(lgkm=0)
    g.raw(f"buffer_store_dwordx4 {vr(vS+12,4)}, v{vD}, s[20:23], s38 offen offset:1024 sc1","vmem",R(vS+12,4)+R(vD),[],load=False)
    g.salu("s_mov_b32 exec_hi, -1")
    pk("v_pk_add_f32",T+6,A,A+2)
    pk("v_pk_add_f32",T+10,A+4,A+6)
    pk("v_pk_add_f32",T+12,A+8,A+10)
    pk("v_pk_add_f32",T+14,A+12,A+14)
    pk("v_pk_add_f32",T+6,T+6,T+10)
    pk("v_pk_add_f32",T+12,T+12,T+14)
    pk("v_pk_add_f32",T+6,T+6,T+12)
    g.v(f"v_add_f32 v{T+6}, v{T+6}, v{T+7}",R(T+6,2),R(T+6))
    g.v(f"v_fma_f32 v{T+6}, v{T+6}, 0, v{T+3}",R(T+6)+R(T+3),R(T+6))
    g.v(f"v_cmp_le_f32 vcc, 1.0, v{T+6}",R(T+6),[])
    g.v(f"v_cmp_ge_f32 s[42:43], s44, v{T+6}",R(T+6),[])
    g.nop(3)
    g.salu("s_and_b64 vcc, vcc, s[42:43]")
    g.salu("s_or_b64 vcc, vcc, s[46:47]")
    g.salu("s_cmp_eq_u64 vcc, -1")
    g.salu("s_cbranch_scc0 L_slow")
    if opt.get("stamps") or opt.get("fine"):
        g.stamp(6); g.wait(vm=0); g.stamp(7)
        g.salu("s_load_dwordx2 s[50:51], s[0:1], 0x28")
        g.wait(lgkm=0)
        g.valu("v_mov_b32 v1, 0",[],["v1"])
        for k in range(17 if opt.get("fine") else 8): g.raw(f"v_writelane_b32 v1, s{60+2*k}, {k}","valu")
        g.salu("s_lshl_b32 s52, s2, 3")
        g.salu("s_add_u32 s52, s52, s28")
        g.salu("s_lshl_b32 s52, s52, 8")
        g.valu(f"v_lshl_add_u32 v0, v{vLANE}, 2, s52",R(vLANE),["v0"])
        g.raw("global_store_dword v0, v1, s[50:51]","vmem")
    if opt.get("enc"):
        a,b,mul=[int(x) for x in opt["enc"].split(",")]
        g.stamp(6); g.wait(vm=0); g.stamp(7)
        g.wait(lgkm=0)
        g.salu(f"s_sub_u32 s52, s{60+2*b}, s{60+2*a}")
        g.salu(f"s_mul_i32 s52, s52, {mul}")
        g.label("L_spin")
        g.salu(("s_memrealtime" if opt.get("rt") else "s_memtime")+" s[54:55]")
        g.wait(lgkm=0)
        g.salu("s_sub_u32 s53, s54, s74")
        g.salu("s_cmp_lt_u32 s53, s52")
        g.salu("s_cbranch_scc1 L_spin")
    g.label("L_end")
    g.raw("s_endpgm","salu")
    errs=g.check()
    return g, slow_path(opt), errs

def slow_path(opt):
    g=G({}); T=vT
    A=vO+48; X=vO; Qr=vQ+24; KFr=vKF; VFr=vV; Sr=vS; m=T+8; VA=vVA+1; MK=vVA+2
    g.label("L_slow")
    g.wait(vm=0,lgkm=0)
    g.salu("s_mov_b64 s[46:47], -1")
    g.salu("s_add_u32 s16, s6, s29"); g.salu("s_addc_u32 s17, s7, 0")
    g.salu("s_add_u32 s24, s8, s29"); g.salu("s_addc_u32 s25, s9, 0")
    g.salu(f"s_mov_b32 s26, {HEADB}"); g.salu("s_mov_b32 s27, 0x20000")
    g.salu(f"s_add_u32 s49, s48, {VRING}")
    g.v(f"v_add_u32 v{vK}, s49, v{vQO}",R(vQO),R(vK))
    g.salu("s_add_u32 s41, s48, 2048")
    g.v(f"v_add_u32 v{VA}, s41, v{vVH0}",R(vVH0),R(VA))
    g.v(f"v_and_b32 v{T+10}, 0x13, v{vLANE}",R(vLANE),R(T+10))
    g.v(f"v_cmp_eq_u32 vcc, 0x13, v{T+10}",R(T+10),[])
    g.nop(1)
    g.v(f"v_cndmask_b32 v{VA}, v{VA}, v{vVH0}, vcc",R(VA)+R(vVH0),R(VA))
    g.v(f"v_cmp_gt_u32 vcc, 32, v{vLANE}",R(vLANE),[])
    g.nop(1)
    g.v(f"v_cndmask_b32 v{MK}, 0, -1, vcc",[],R(MK))
    for k in range(16): g.v(f"v_mov_b32 v{A+k}, 0",[],R(A+k))
    for k in range(16): g.v(f"v_mov_b32 v{X+k}, 0",[],R(X+k))
    g.v(f"v_mov_b32 v{m}, 0xff7fffff",[],R(m))
    g.salu("s_mov_b32 s30, 0")
    g.label("L_slow_loop")
    g.salu("s_mov_b32 m0, s49")
    g.nop(0)
    for k in range(2): g.raw(f"buffer_load_dwordx4 v{vD}, s[16:19], s30 offen offset:{1024*k} lds","vmem",R(vD),[],load=False)
    g.salu("s_add_u32 m0, s49, 2048")
    g.nop(0)
    for k in range(2): g.raw(f"buffer_load_dwordx4 v{vD}, s[24:27], s30 offen offset:{1024*k} lds","vmem",R(vD),[],load=False)
    g.wait(vm=0)
    for rho in range(4): g.dsread("ds_read_b64",KFr+2*rho,2,vK,8*rho)
    for i in range(4): g.dsread("ds_read_b64_tr_b16",VFr+2*i,2,VA,[0,224,896,1120][i])
    g.wait(lgkm=0)
    for k in range(2): g.v(f"v_and_b32 v{KFr+k}, v{KFr+k}, v{MK}",R(KFr+k)+R(MK),R(KFr+k))
    g.nop(1)
    g.mfma(Sr,KFr,Qr,None); g.mfma(Sr,KFr+4,Qr+4,Sr)
    g.nop(11)
    t=T+12
    g.v(f"v_max3_f32 v{t}, v{Sr}, v{Sr+1}, v{m}",R(Sr,2)+R(m),R(t))
    for k in range(1,8): g.v(f"v_max3_f32 v{t}, v{Sr+2*k}, v{Sr+2*k+1}, v{t}",R(Sr+2*k,2)+R(t),R(t))
    g.v(f"v_mov_b32 v{t+1}, v{t}",R(t),R(t+1))
    g.nop(1)
    g.v(f"v_permlane32_swap_b32 v{t}, v{t+1}",R(t,2),R(t,2))
    g.nop(1)
    g.v(f"v_max_f32 v{t}, v{t}, v{t+1}",R(t,2),R(t))
    g.v(f"v_sub_f32 v{t+1}, v{m}, v{t}",R(m)+R(t),R(t+1))
    g.valu(f"v_exp_f32 v{t+1}, v{t+1}",R(t+1),R(t+1),trans=True)
    g.v(f"v_mov_b32 v{m}, v{t}",R(t),R(m))
    for k in range(16): g.v(f"v_sub_f32 v{Sr+k}, v{Sr+k}, v{t}",R(Sr+k)+R(t),R(Sr+k))
    for k in range(16): g.exp(Sr+k)
    for k in range(16): g.v(f"v_mul_f32 v{A+k}, v{A+k}, v{t+1}",R(A+k)+R(t+1),R(A+k))
    g.nop(1)
    g.smfmac(A,VFr,Sr,vIDX); g.smfmac(A,VFr+4,Sr+8,vIDX)
    g.nop(11)
    g.salu(f"s_add_u32 s30, s30, {TILE}")
    g.salu(f"s_cmp_lt_u32 s30, {HEADB}")
    g.salu("s_cbranch_scc1 L_slow_loop")
    g.v(f"v_mov_b32 v{T+2}, v{A+12}",R(A+12),R(T+2))
    g.v(f"v_mov_b32 v{T+3}, v{A+12}",R(A+12),R(T+3))
    g.nop(1)
    g.v(f"v_permlane32_swap_b32 v{T+2}, v{T+3}",R(T+2,2),R(T+2,2))
    g.nop(1)
    g.salu("s_branch L_final")
    e=g.check()
    if e: print("slow path errs:",e,file=sys.stderr)
    return g

HDR=f"""; Fused attention forward, B*H = 32 heads, S = 2048, Dh = 28, bf16 in / bf16 out.
; @launch grid=(256,1,1) block=(512,1,1) lds={LDS}
.amdgcn_target "amdgcn-amd-amdhsa--gfx950"
.text
.globl {NAME}_kernel
.p2align 8
.type {NAME}_kernel,@function
{NAME}_kernel:
"""
FTR=f""".section .rodata,"a"
.p2align 6
.amdhsa_kernel {NAME}_kernel
  .amdhsa_next_free_vgpr {NV}
  .amdhsa_next_free_sgpr 96
  .amdhsa_accum_offset {NV}
  .amdhsa_group_segment_fixed_size 0
  .amdhsa_kernarg_size 48
  .amdhsa_user_sgpr_count 2
  .amdhsa_user_sgpr_kernarg_segment_ptr 1
  .amdhsa_system_sgpr_workgroup_id_x 1
.end_amdhsa_kernel
"""
if __name__=="__main__":
    opt={"hp":"[(0,2),(2,1),(4,0)]","ep":"0,0,1,0","lv":"0.75,0.92,0.975"}
    out=sys.argv[1]
    for a in sys.argv[2:]:
        k,_,v=a.partition("="); opt[k]=v or 1
    g,sl,errs=build(opt)
    for e in errs: print("HAZARD:",e,file=sys.stderr)
    open(out,"w").write(HDR+g.text()+sl.text()+FTR)
```
